```python
import torch

def _softmax(x, axis=-1):
    return torch.softmax(x, dim=axis)
def _gelu(x):
    return torch.nn.functional.gelu(x, approximate="tanh")
def _silu(x):
    return torch.nn.functional.silu(x)
def _sigmoid(x):
    return torch.sigmoid(x)
def _layernorm(x, axis=-1, eps=1e-5):
    m = x.mean(dim=axis, keepdim=True)
    v = x.var(dim=axis, keepdim=True, unbiased=False)
    return (x - m) / torch.sqrt(v + eps)
def _scatter_add(tgt, idx, src, axis=0):
    return tgt.clone().index_add_(axis, idx, src)
def _segment_sum(src, seg, n):
    out = torch.zeros((n,) + src.shape[1:], dtype=src.dtype)
    return out.index_add_(0, seg, src)
def _pad(x, pw):
    flat = tuple(v for pair in reversed(pw) for v in pair)
    return torch.nn.functional.pad(x, flat)

kernel_name = 'gated_mix__grouped_kv_mqa__mixer_token_mlp__prompt'

def setup_inputs():

    _w = (lambda a: (lambda t: t.to(torch.bfloat16) if t.is_floating_point() else t)(torch.as_tensor(a)))
    def _A_setup():
        B, S, D, H = 1, 2048, 640, 32
        Dh = D // H
        return {
            "x": _w((lambda *s: torch.randn(*s, dtype=torch.bfloat16) * 0.05)(B, S, D)),
            "wq": _w((lambda *s: torch.randn(*s, dtype=torch.bfloat16) * 0.8)(D, H * Dh)),
            "wk": _w((lambda *s: torch.randn(*s, dtype=torch.bfloat16) * 0.8)(D, Dh)),
            "wv": _w((lambda *s: torch.randn(*s, dtype=torch.bfloat16) * 0.05)(D, Dh)),
            "wo": _w((lambda *s: torch.randn(*s, dtype=torch.bfloat16) * 0.05)(H * Dh, D)),
        }
    _A_in = _A_setup()

    def _B_setup():
        B, S, D, F = 1, 2048, 640, 1728
        return {
            "x": _w((lambda *s: torch.randn(*s, dtype=torch.bfloat16) * 0.05)(B, S, D)),
            "w1": _w((lambda *s: torch.randn(*s, dtype=torch.bfloat16) * 0.2)(S, F) * (S ** -0.5)),
            "b1": _w((lambda *s: torch.randn(*s, dtype=torch.bfloat16) * 3.2)(F) * 0.02),
            "w2": _w((lambda *s: torch.randn(*s, dtype=torch.bfloat16) * 0.05)(F, S) * (F ** -0.5)),
            "b2": _w((lambda *s: torch.randn(*s, dtype=torch.bfloat16) * 0.1)(S) * 0.02),
        }
    _B_in = _B_setup()

    return {
        "A_x": _A_in["x"],
        "A_wq": _A_in["wq"],
        "A_wk": _A_in["wk"],
        "A_wv": _A_in["wv"],
        "A_wo": _A_in["wo"],
        "B_x": _B_in["x"],
        "B_w1": _B_in["w1"],
        "B_b1": _B_in["b1"],
        "B_w2": _B_in["w2"],
        "B_b2": _B_in["b2"],
        "gate_w": _w((lambda *s: torch.randn(*s, dtype=torch.bfloat16) * 0.05)(640) * 16.0),
    }

def reference(A_x, A_wq, A_wk, A_wv, A_wo, B_x, B_w1, B_b1, B_w2, B_b2, gate_w):
    def _A_ref(x, wq, wk, wv, wo):
        B, S, D = x.shape
        H = 32
        Dh = D // H
        q = (lambda x, *d: x.permute(*d))((x @ wq).reshape(B, S, H, Dh), 0, 2, 1, 3)
        k = x @ wk
        v = x @ wv
        scores = torch.einsum("bhqd,bkd->bhqk", q, k) * (Dh ** -0.5)
        p = _softmax(scores, axis=-1)
        o = torch.einsum("bhqk,bkd->bhqd", p, v)
        return (lambda x, *d: x.permute(*d))(o, 0, 2, 1, 3).reshape(B, S, H * Dh) @ wo

    def _B_ref(x, w1, b1, w2, b2):
        B, S, D = x.shape
        h = _layernorm(x, axis=-1)
        u = torch.einsum("bsd,sf->bdf", h, w1) + b1
        u = _gelu(u)
        y = torch.einsum("bdf,fs->bds", u, w2) + b2
        return (lambda x, *d: x.permute(*d))(y, 0, 2, 1)

    x = A_x
    g = _sigmoid((x * gate_w).sum(-1, keepdims=True))
    a = _A_ref(x, A_wq, A_wk, A_wv, A_wo)
    b = _B_ref(x, B_w1, B_b1, B_w2, B_b2)
    return g * a + (1 - g) * b
```

```python
import re

TRANS = ("v_exp_", "v_log_", "v_rcp_", "v_rsq_", "v_sqrt_", "v_sin_", "v_cos_")


def regs_of(tok):
    tok = tok.strip()
    tok = re.sub(r"^-|^\|", "", tok)
    tok = tok.replace("|", "")
    m = re.match(r"^abs\((.*)\)$", tok)
    if m:
        tok = m.group(1)
    m = re.match(r"^([vsa])(\d+)$", tok)
    if m:
        return {(m.group(1), int(m.group(2)))}
    m = re.match(r"^([vsa])\[(\d+):(\d+)\]$", tok)
    if m:
        return {(m.group(1), i) for i in range(int(m.group(2)), int(m.group(3)) + 1)}
    if tok in ("vcc", "vcc_lo", "vcc_hi"):
        return {("x", "vcc")}
    if tok in ("exec", "exec_lo", "exec_hi"):
        return {("x", "exec")}
    if tok == "m0":
        return {("x", "m0")}
    return set()


class Ins:
    def __init__(self, text, nohaz=False):
        self.text = text
        self.nohaz = nohaz
        t = text.split(";")[0].strip()
        self.label = t.endswith(":")
        self.directive = t.startswith(".") and not self.label
        self.mn = "" if (self.label or self.directive or not t) else t.split()[0]
        rest = t[len(self.mn):].strip() if self.mn else ""
        parts = [p.strip() for p in re.split(r",(?![^\[]*\])", rest)] if rest else []
        self.mods = ""
        if parts:
            lp = parts[-1].split()
            parts[-1] = lp[0] if lp else ""
            self.mods = " ".join(lp[1:])
        self.ops = parts
        mn = self.mn
        self.is_mfma = mn.startswith("v_mfma") or mn.startswith("v_smfmac")
        self.is_valu = mn.startswith("v_") and not self.is_mfma
        self.is_trans = mn.startswith(TRANS)
        self.is_ds = mn.startswith("ds_")
        self.is_vmem = mn.startswith(("buffer_", "global_", "flat_"))
        self.is_salu = mn.startswith("s_")
        self.is_dpp = ("row_" in self.mods or "quad_perm" in self.mods or "wave_" in self.mods
                       or mn.endswith("_dpp"))
        self.is_sdwa = mn.endswith("_sdwa")
        self.dst = set()
        self.src = set()
        self.srcC = set()
        self.srcAB = set()
        self.store_data = set()
        o = [regs_of(x) for x in parts]
        if self.is_mfma:
            self.dst = o[0]
            self.srcAB = o[1] | o[2]
            if mn.startswith("v_smfmac"):
                self.srcC = o[0]
                self.srcAB |= o[3]
            else:
                self.srcC = o[3]
            self.src = self.srcAB | self.srcC
            if "32x32" in mn:
                self.passes = 8
            elif "16x16" in mn:
                self.passes = 4
            else:
                raise ValueError(mn)
        elif self.is_valu:
            self.dst = set(o[0]) if o else set()
            srcs = o[1:]
            if mn.startswith(("v_add_co", "v_sub_co", "v_addc_co", "v_subb_co", "v_div_scale", "v_mad_u64")):
                self.dst |= o[1]
                srcs = o[2:]
            if mn.startswith("v_cmpx"):
                self.dst |= {("x", "exec")}
            for s in srcs:
                self.src |= s
            if mn.startswith(("v_fmac", "v_pk_fmac", "v_dot2c", "v_writelane")) or self.is_dpp or self.is_sdwa:
                self.src |= o[0]
            if mn.startswith("v_permlane") and "swap" in mn:
                self.dst |= o[1]
                self.src |= o[0]
            if mn.startswith("v_swap"):
                self.dst |= o[1]
                self.src |= o[0]
        elif self.is_ds:
            if mn.startswith(("ds_read", "ds_bpermute", "ds_permute", "ds_swizzle")) or "_rtn" in mn:
                self.dst = o[0]
                for s in o[1:]:
                    self.src |= s
            else:
                for s in o:
                    self.src |= s
        elif self.is_vmem:
            lds = " lds" in (" " + self.mods)
            if mn.startswith("buffer_load"):
                if lds:
                    for s in o:
                        self.src |= s
                    self.src |= {("x", "m0")}
                else:
                    self.dst = o[0]
                    for s in o[1:]:
                        self.src |= s
            elif mn.startswith("global_load"):
                self.dst = o[0]
                for s in o[1:]:
                    self.src |= s
            else:
                for s in o:
                    self.src |= s
                if mn.startswith("buffer_store") and ("x4" in mn or "x3" in mn):
                    self.store_data = o[0]
                if mn.startswith("global_store") and ("x4" in mn or "x3" in mn):
                    self.store_data = o[1]
            self.lds = lds
        elif self.is_salu:
            if mn.startswith(("s_cmp", "s_cbranch", "s_branch", "s_waitcnt", "s_nop", "s_barrier", "s_endpgm",
                              "s_setprio", "s_sleep", "s_bitcmp")):
                for s in o:
                    self.src |= s
            else:
                self.dst = set(o[0]) if o else set()
                for s in o[1:]:
                    self.src |= s
                if "saveexec" in mn:
                    self.dst |= {("x", "exec")}

    def states(self):
        if self.label or self.directive or not self.mn:
            return 0
        if self.mn == "s_nop":
            return int(self.ops[0], 0) + 1
        return 1


def vonly(s):
    return {r for r in s if r[0] in "va"}


def sonly(s):
    return {r for r in s if r[0] == "s" or r == ("x", "vcc")}


def required(p, c):
    n = 0
    if p.is_valu:
        if c.is_mfma and vonly(p.dst) & c.src:
            n = max(n, 2)
        if c.is_mfma and ("x", "exec") in p.dst:
            n = max(n, 4)
        if c.is_valu:
            if c.is_dpp and vonly(p.dst) & c.src:
                n = max(n, 2)
            if c.mn.startswith("v_permlane") and vonly(p.dst) & c.src:
                n = max(n, 2)
            if c.mn.startswith(("v_readlane", "v_readfirstlane")) and vonly(p.dst) & c.src:
                n = max(n, 1)
            if p.is_trans and not c.is_trans and vonly(p.dst) & c.src:
                n = max(n, 1)
            if (p.is_sdwa or "op_sel" in p.mods and not p.mn.startswith("v_pk")) and vonly(p.dst) & (c.src | c.dst):
                n = max(n, 1)
            if sonly(p.dst) & c.src:
                n = max(n, 4 if c.mn.startswith(("v_readlane", "v_writelane")) else 2)
            if ("x", "exec") in p.dst:
                if c.is_dpp:
                    n = max(n, 5)
                elif c.mn.startswith(("v_readlane", "v_readfirstlane", "v_writelane", "v_permlane")):
                    n = max(n, 4)
            if p.mn.startswith("v_dot") and vonly(p.dst) & (c.src | c.dst):
                n = max(n, 3)
        if c.is_vmem and sonly(p.dst) & c.src:
            n = max(n, 5)
        if p.is_trans and (c.is_vmem or c.is_ds) and vonly(p.dst) & c.src:
            n = max(n, 1)
    if p.is_salu and ("x", "m0") in p.dst and c.is_vmem and ("x", "m0") in c.src:
        n = max(n, 1)
    if p.is_vmem and p.store_data and (p.store_data & c.dst):
        n = max(n, 2)
    if p.is_mfma:
        full = {4: 8, 8: 12}[p.passes]
        if c.is_mfma:
            if p.dst & c.srcAB:
                n = max(n, full)
            if p.dst & c.srcC:
                if not (p.dst == c.srcC and p.passes == c.passes):
                    n = max(n, {4: 6, 8: 10}[p.passes])
            elif p.dst & c.dst and p.passes != c.passes:
                n = max(n, full)
        elif c.is_valu or c.is_ds or c.is_vmem:
            if p.dst & (c.src | c.dst):
                n = max(n, full)
            if c.is_valu and p.srcC & c.dst:
                n = max(n, {4: 3, 8: 7}[p.passes])
    return n


class Asm:
    def __init__(self):
        self.ins = []
        self.uid = 0

    def __call__(self, text, nohaz=False):
        for line in text.split("\n"):
            line = line.strip()
            if line:
                self.ins.append(Ins(line, nohaz))

    def label(self, name):
        self.ins.append(Ins(name + ":"))

    def newlabel(self, base):
        self.uid += 1
        return f"L_{base}_{self.uid}"

    def pad(self, verbose=False):
        out = []
        npad = 0

        def need(hist, c):
            dist = 0
            worst = 0
            for p in reversed(hist):
                if p.mn in ("s_branch", "s_endpgm") and p is not hist[-1]:
                    break
                if p.mn:
                    r = required(p, c)
                    if r > dist:
                        worst = max(worst, r - dist)
                dist += p.states()
                if dist >= 20:
                    break
            return worst

        for c in self.ins:
            if c.mn and not c.nohaz:
                hist = out[-40:]
                cut = 0
                for k, p in enumerate(hist):
                    if p.mn in ("s_branch", "s_endpgm"):
                        cut = k + 1
                hist = hist[cut:]
                w = need(hist, c) if hist else 0
                while w > 0:
                    k = min(w, 16)
                    out.append(Ins(f"s_nop {k - 1}"))
                    w -= k
                    npad += 1
            out.append(c)
        self.ins = out
        labels = {i.text.split(":")[0].strip(): k for k, i in enumerate(out) if i.label}
        for k, b in enumerate(out):
            if b.mn.startswith(("s_cbranch", "s_branch")):
                tgt = labels[b.ops[0]]
                hist = out[max(0, k - 40):k + 1]
                cut = 0
                for q, p in enumerate(hist[:-1]):
                    if p.mn in ("s_branch", "s_endpgm"):
                        cut = q + 1
                hist = list(hist[cut:])
                nb = len(hist)
                for c in out[tgt:tgt + 24]:
                    if c.mn and not c.nohaz:
                        dist = 0
                        for q in range(len(hist) - 1, -1, -1):
                            p = hist[q]
                            if p.mn and q < nb and required(p, c) > dist:
                                raise RuntimeError(f"edge hazard: '{p.text}' -> '{c.text}' via {b.text} dist {dist}")
                            dist += p.states()
                    hist.append(c)
                    if c.mn in ("s_branch", "s_endpgm"):
                        break
        if verbose:
            print("padded", npad)

    def text(self):
        return "\n".join((i.text if (i.label or i.directive) else "    " + i.text) for i in self.ins) + "\n"
```

```python
import sys, struct, math
sys.path.insert(0, "gen")
from asmlib import Asm

NAME = "gated_mix__grouped_kv_mqa__mixer_token_mlp__prompt"


def f2u(x):
    return struct.unpack("<I", struct.pack("<f", x))[0]


def fl(x):
    return "0x%08x" % f2u(x)


WS_FKV, WS_FH, WS_FU, WS_FO, WS_G = 0x08000, 0x10000, 0x18000, 0x20000, 0x28000
WS_K16, WS_K8, WS_V = 0x40000, 0x50000, 0x58000
WS_HT, WS_U, WS_O = 0x100000, 0x400000, 0x700000
WS_PROF = 0xA00000
WS_SIZE = 0xB00000
OOB = 0x40000000

L_WKV, L_LNS, L_WQ = 81920, 107520, 118272
RING = 27648
L_QO, QOB = 110592, 4864
L_MROW = 149504
L_MISC = 163328
C_H, C_G1A, C_G1B, C_A, C_O, C_F1, C_F2 = 0, 4, 8, 12, 16, 20, 24
C_QMAX, C_KMAX = 32, 36
M_G8, M_G64 = 64, 128
LDS_SIZE = 163840

sX, sWQ, sWK, sWV_, sWO, sW1, sB1, sW2, sB2, sGW, sOUT, sWS = 4, 6, 8, 10, 12, 16, 18, 20, 22, 24, 26, 30
WS, SA, SB, SC = 32, 36, 40, 44
sW, sCB, sTB, sPID, sN, sFB = 48, 49, 50, 51, 52, 53
SPIN_MAX = 1 << 15

QSCALE = math.log2(math.e) / math.sqrt(20.0)
SAFE_M = 32.0


def gen(profile=False, opt=None):
    opt = opt or {}
    a = Asm()

    def srd(r):
        return f"s[{r}:{r+3}]"

    def mksrd(r, p, size):
        a(f"s_mov_b32 s{r}, s{p}\ns_mov_b32 s{r+1}, s{p+1}\ns_mov_b32 s{r+2}, {size}\ns_mov_b32 s{r+3}, 0x00020000")

    def stamp(k):
        if profile:
            a(f"s_memtime s[{64+2*k}:{65+2*k}]")

    def vr(b, n):
        return f"v[{b}:{b+n-1}]"

    def lane(v):
        a(f"v_mbcnt_lo_u32_b32 v{v}, -1, 0\nv_mbcnt_hi_u32_b32 v{v}, -1, v{v}")

    def arrive(cnt, va, vb):
        a(f"""s_mov_b64 exec, 1
        v_mov_b32 v{va}, {L_MISC}
        v_mov_b32 v{vb}, 1
        ds_add_u32 v{va}, v{vb} offset:{cnt}
        s_mov_b64 exec, -1""")

    def arrive_flag(cnt, last, va, vb, soff):
        skip = a.newlabel("nf")
        a(f"""s_mov_b64 exec, 1
        v_mov_b32 v{va}, {L_MISC}
        v_mov_b32 v{vb}, 1
        ds_add_rtn_u32 v{vb}, v{va}, v{vb} offset:{cnt}
        v_mov_b32 v{va}, 0
        s_waitcnt lgkmcnt(0)
        v_readfirstlane_b32 s96, v{vb}
        v_mov_b32 v{vb}, s{sN}
        s_cmp_lg_u32 s96, {last}
        s_cbranch_scc1 {skip}
        buffer_store_dword v{vb}, v{va}, {srd(WS)}, s{soff} offen sc1""")
        a.label(skip)
        a("s_mov_b64 exec, -1")

    def wait_cnt(cnt, target, va, vb, sleep=1):
        lp, dn = a.newlabel("wc"), a.newlabel("wd")
        a(f"v_mov_b32 v{va}, {L_MISC}\ns_mov_b32 s97, 0")
        a.label(lp)
        a(f"""ds_read_b32 v{vb}, v{va} offset:{cnt}
        s_add_u32 s97, s97, 1
        s_waitcnt lgkmcnt(0)
        v_readfirstlane_b32 s96, v{vb}
        s_cmp_ge_u32 s96, {target}
        s_cbranch_scc1 {dn}
        s_sleep {sleep}
        s_cmp_lt_u32 s97, {SPIN_MAX * 8}
        s_cbranch_scc1 {lp}""")
        a.label(dn)

    def poll(voff, soff, vd, wide=False):
        lp, dn = a.newlabel("pl"), a.newlabel("pd")
        a("s_mov_b32 s97, 0")
        a.label(lp)
        if wide:
            a(f"buffer_load_dwordx2 {vr(vd,2)}, v{voff}, {srd(WS)}, s{soff} offen sc1")
        else:
            a(f"buffer_load_dword v{vd}, v{voff}, {srd(WS)}, s{soff} offen sc1")
        a(f"""s_add_u32 s97, s97, 1
        s_waitcnt vmcnt(0)
        v_cmp_ne_u32 vcc, s{sN}, v{vd}
        s_cbranch_vccz {dn}
        s_sleep 1
        s_cmp_lt_u32 s97, {SPIN_MAX}
        s_cbranch_scc1 {lp}""")
        a.label(dn)

    a(f"""s_cmp_ge_u32 s2, 256
    s_cbranch_scc1 L_end
    s_load_dwordx16 s[4:19], s[0:1], 0
    s_load_dwordx8 s[20:27], s[0:1], 64
    s_load_dwordx4 s[28:31], s[0:1], 96""")
    if profile:
        a("s_memrealtime s[92:93]")
    stamp(0)
    a(f"""v_lshrrev_b32 v1, 6, v0
    v_and_b32 v0, 63, v0
    v_readfirstlane_b32 s{sW}, v1
    s_lshr_b32 s54, s2, 3
    s_and_b32 s55, s2, 1
    s_lshl_b32 s55, s55, 2
    s_and_b32 s56, s54, 3
    s_add_u32 s{sCB}, s55, s56
    s_bfe_u32 s55, s2, 0x20001
    s_lshr_b32 s54, s54, 2
    s_lshl_b32 s56, s55, 3
    s_add_u32 s{sTB}, s56, s54
    s_mul_i32 s55, s55, 7
    s_add_u32 s{sFB}, s55, s54
    s_cmp_eq_u32 s54, 7
    s_cselect_b32 s{sFB}, 99, s{sFB}
    s_lshl_b32 s{sPID}, s{sTB}, 3
    s_add_u32 s{sPID}, s{sPID}, s{sCB}
    s_waitcnt lgkmcnt(0)
    s_load_dword s{sN}, s[{sWS}:{sWS+1}], 0""")
    mksrd(WS, sWS, WS_SIZE)
    a(f"""s_cmp_ge_u32 s{sW}, 8
    s_cbranch_scc1 L_gemm""")

    def nonce():
        a(f"s_mul_i32 s{sN}, s{sN}, 0x9E3779B1\ns_add_u32 s{sN}, s{sN}, 0x7F4A7C15")

    mksrd(SA, sX, 2621440)
    a(f"""v_lshrrev_b32 v1, 4, v0
    v_and_b32 v4, 15, v0
    s_lshl_b32 s54, s{sW}, 3
    v_add_u32 v5, s54, v1
    v_and_b32 v5, 15, v5
    v_xor_b32 v6, v4, v5
    v_xor_b32 v7, 4, v6
    v_mul_u32_u24 v1, 1280, v1
    v_lshl_add_u32 v2, v6, 4, v1
    v_lshl_add_u32 v3, v7, 4, v1
    v_add_u32 v3, 5120, v3
    s_mul_i32 s54, s{sTB}, 81920
    s_mul_i32 s55, s{sW}, 10240
    s_add_u32 s54, s54, s55
    s_lshl_b32 s55, s{sW}, 11""")
    for cg in range(5):
        for j in range(2):
            a(f"s_add_u32 m0, s55, {j*1024 + cg*16128}")
            a(f"buffer_load_dwordx4 v{2+j}, {srd(SA)}, s54 offen offset:{cg*256} lds")
    mksrd(SB, sGW, 1280)
    a("v_lshlrev_b32 v1, 2, v0")
    for i in range(5):
        a(f"buffer_load_dword v{14+i}, v1, {srd(SB)}, 0 offen offset:{256*i}")
    a(f"""v_and_b32 v4, 60, v1
    v_add_u32 v4, {L_MISC}, v4
    v_mov_b32 v5, 0
    ds_write_b32 v4, v5""")
    a(f"""s_lshl_b32 s54, s{sCB}, 3
    s_add_u32 s54, s54, s{sW}
    s_and_b32 s55, s54, 15
    s_lshl_b32 s54, s54, 8
    v_lshrrev_b32 v4, 2, v0
    v_xor_b32 v4, s55, v4
    v_and_b32 v5, 3, v0
    v_lshlrev_b32 v5, 2, v5
    v_lshl_add_u32 v4, v4, 4, v5
    v_add_u32 v4, s54, v4
    v_add_u32 v5, 0x10000, v4
    s_mul_i32 s54, s{sW}, 1344
    s_add_u32 s54, s54, {L_LNS}
    v_add_u32 v6, s54, v1
    s_waitcnt vmcnt(0) lgkmcnt(0)""")
    nonce()
    for i in range(5):
        a(f"v_lshlrev_b32 v{30+2*i}, 16, v{14+i}\nv_and_b32 v{31+2*i}, 0xffff0000, v{14+i}")
    stamp(1)
    a("s_barrier")
    for i in range(4):
        a(f"ds_read_b32 v{8+i}, v4 offset:{16384*i}")
    a("ds_read_b32 v12, v5\ns_waitcnt lgkmcnt(0)")
    for i in range(5):
        a(f"v_lshlrev_b32 v{20+2*i}, 16, v{8+i}\nv_and_b32 v{21+2*i}, 0xffff0000, v{8+i}")
    a("v_pk_add_f32 v[8:9], v[20:21], v[22:23]\nv_pk_mul_f32 v[10:11], v[20:21], v[30:31]")
    for i in range(1, 5):
        if i > 1:
            a(f"v_pk_add_f32 v[8:9], v[8:9], {vr(20+2*i,2)}")
        a(f"v_pk_fma_f32 v[10:11], {vr(20+2*i,2)}, {vr(30+2*i,2)}, v[10:11]")
    a("v_add_f32 v8, v8, v9\nv_add_f32 v10, v10, v11")
    DPP = ["row_ror:8 row_mask:0xf", "row_ror:4 row_mask:0xf", "row_ror:2 row_mask:0xf", "row_ror:1 row_mask:0xf",
           "row_bcast:15 row_mask:0xa", "row_bcast:31 row_mask:0xc"]
    for d in DPP:
        a(f"v_add_f32_dpp v8, v8, v8 {d} bank_mask:0xf\nv_add_f32_dpp v10, v10, v10 {d} bank_mask:0xf")
    a(f"""v_mul_f32 v8, {fl(-1.0/640)}, v8
    v_mul_f32 v10, {fl(-math.log2(math.e))}, v10
    v_readlane_b32 s56, v8, 63
    v_exp_f32 v10, v10""")
    for i in range(5):
        a(f"v_pk_add_f32 {vr(20+2*i,2)}, {vr(20+2*i,2)}, s[56:57] op_sel_hi:[1,0]")
    a("v_add_f32 v10, 1.0, v10\nv_pk_mul_f32 v[8:9], v[20:21], v[20:21]\nv_rcp_f32 v10, v10")
    for i in range(1, 5):
        a(f"v_pk_fma_f32 v[8:9], {vr(20+2*i,2)}, {vr(20+2*i,2)}, v[8:9]")
    a("v_add_f32 v8, v8, v9")
    for d in DPP:
        a(f"v_add_f32_dpp v8, v8, v8 {d} bank_mask:0xf")
    a(f"""v_mul_f32 v8, {fl(1.0/640)}, v8
    v_add_f32 v8, {fl(1e-5)}, v8
    v_rsq_f32 v8, v8
    s_lshl_b32 s54, s{sW}, 2
    s_add_u32 s54, s54, {L_MISC + M_G8}
    v_readlane_b32 s56, v8, 63
    v_mov_b32 v9, s54""")
    for i in range(5):
        a(f"v_pk_mul_f32 {vr(20+2*i,2)}, {vr(20+2*i,2)}, s[56:57] op_sel_hi:[1,0]")
    for i in range(5):
        a(f"v_cvt_pk_bf16_f32 v{12+i}, v{20+2*i}, v{21+2*i}")
        a(f"ds_write_b32 v6, v{12+i} offset:{256*i}")
    a("""s_mov_b32 exec_lo, 0
    s_mov_b32 exec_hi, 0x80000000
    ds_write_b32 v9, v10
    s_mov_b64 exec, -1
    s_waitcnt lgkmcnt(0)""")
    stamp(2)
    a("s_barrier")
    a(f"""s_cmp_eq_u32 s{sW}, 0
    s_cbranch_scc1 L_kvfin
    s_cmp_ge_u32 s{sW}, 6
    s_cbranch_scc1 L_kvpoll""")
    a(f"""v_bfe_u32 v2, v0, 2, 2
    v_mul_u32_u24 v2, 1344, v2
    v_lshrrev_b32 v3, 4, v0
    v_lshl_add_u32 v2, v3, 5, v2
    v_and_b32 v4, 3, v0
    v_lshl_add_u32 v2, v4, 3, v2
    s_lshl_b32 s54, s{sW}, 8
    s_add_u32 s54, s54, {L_LNS - 256}
    v_add_u32 v2, s54, v2
    ds_read_b64_tr_b16 v[8:9], v2
    ds_read_b64_tr_b16 v[10:11], v2 offset:5376
    ds_read_b64_tr_b16 v[12:13], v2 offset:128
    ds_read_b64_tr_b16 v[14:15], v2 offset:5504
    v_and_b32 v4, 15, v0
    v_lshlrev_b32 v4, 4, v4
    v_lshl_add_u32 v3, v3, 10, v4
    s_lshr_b32 s54, s{sPID}, 2
    s_mul_i32 s54, s54, 40960
    s_and_b32 s55, s{sCB}, 3
    s_lshl_b32 s55, s55, 8
    s_add_u32 s54, s54, s55
    s_lshl_b32 s55, s{sW}, 13
    s_add_u32 s54, s54, s55
    s_add_u32 s54, s54, {WS_HT - 8192}
    s_add_u32 s55, s54, 4096
    s_waitcnt lgkmcnt(2)
    buffer_store_dwordx4 v[8:11], v3, {srd(WS)}, s54 offen sc1
    s_waitcnt lgkmcnt(0)
    buffer_store_dwordx4 v[12:15], v3, {srd(WS)}, s55 offen sc1
    s_lshl_b32 s54, s{sPID}, 7
    s_add_u32 s54, s54, {WS_FH}
    s_waitcnt vmcnt(0)""".replace("s_waitcnt lgkmcnt(2)", "s_waitcnt lgkmcnt(0)" if profile else "s_waitcnt lgkmcnt(2)"))
    arrive_flag(C_H, 4, 2, 3, 54)
    a("s_branch L_kvpoll")

    a.label("L_kvfin")
    a(f"""v_add_u32 v6, {L_MISC + M_G8}, v1
    ds_read_b32 v7, v6
    s_and_b32 s57, s{sCB}, 3
    s_cmp_ge_u32 s{sCB}, 4
    s_cselect_b32 s54, 31, 15
    s_cselect_b32 s55, 5, 4
    s_cselect_b32 s56, 5, 9
    s_lshl_b32 s56, s56, 4
    v_and_b32 v2, s54, v0
    v_lshrrev_b32 v3, s55, v0
    v_mul_u32_u24 v4, s56, v2
    v_lshl_add_u32 v4, v3, 5, v4
    v_add_u32 v4, {L_WKV}, v4""")
    for p in range(4):
        a(f"ds_read_b128 {vr(8+8*p,4)}, v4 offset:{p*6400}\nds_read_b128 {vr(12+8*p,4)}, v4 offset:{p*6400+16}")
    a(f"""s_lshl_b32 s58, s{sPID}, 7
    s_add_u32 s59, s58, {WS_G}
    s_add_u32 s58, s58, {WS_FKV}
    s_waitcnt lgkmcnt(0)
    s_mov_b64 exec, 0xff
    buffer_store_dword v7, v1, {srd(WS)}, s59 offen sc1
    s_mov_b64 exec, -1""")
    for i in range(4):
        a(f"v_pk_add_f32 {vr(8+2*i,2)}, {vr(8+2*i,2)}, {vr(16+2*i,2)}")
        a(f"v_pk_add_f32 {vr(24+2*i,2)}, {vr(24+2*i,2)}, {vr(32+2*i,2)}")
    for i in range(4):
        a(f"v_pk_add_f32 {vr(8+2*i,2)}, {vr(8+2*i,2)}, {vr(24+2*i,2)}")
    for i in range(4):
        a(f"v_cvt_pk_bf16_f32 v{16+i}, v{8+2*i}, v{9+2*i}")
    a(f"""s_cmp_ge_u32 s{sCB}, 4
    s_cbranch_scc1 L_vfin""")
    a(f"""s_lshl_b32 s54, s{sTB}, 2
    s_add_u32 s54, s54, s57
    s_lshr_b32 s55, s54, 1
    s_lshl_b32 s55, s55, 10
    s_and_b32 s56, s54, 1
    s_lshl_b32 s56, s56, 8
    s_add_u32 s55, s55, s56
    s_add_u32 s55, s55, {WS_K16}
    s_lshl_b32 s54, s54, 7
    s_add_u32 s54, s54, {WS_K8}
    v_lshlrev_b32 v4, 4, v2
    v_lshl_add_u32 v4, v3, 9, v4
    v_lshlrev_b32 v5, 3, v2
    s_mov_b32 exec_hi, 0
    buffer_store_dwordx4 v[16:19], v4, {srd(WS)}, s55 offen sc1
    s_mov_b32 exec_lo, 0
    s_mov_b32 exec_hi, 0xffff
    buffer_store_dwordx2 v[16:17], v5, {srd(WS)}, s54 offen sc1
    s_mov_b64 exec, -1
    v_mov_b32 v21, 0
    s_mov_b32 exec_hi, 0xffff""")
    for i in range(4):
        a(f"v_fmac_f32 v21, v{8+i}, v{8+i}")
    a("s_mov_b32 exec_hi, 0")
    for i in range(4, 8):
        a(f"v_fmac_f32 v21, v{8+i}, v{8+i}")
    a("""s_mov_b64 exec, -1
    v_mov_b32 v22, v21
    v_permlane32_swap_b32 v21, v22
    v_add_f32 v21, v21, v22
    v_mov_b32 v22, v21
    v_permlane16_swap_b32 v21, v22
    v_add_f32 v21, v21, v22""")
    for d in DPP[:4]:
        a(f"v_max_u32_dpp v21, v21, v21 {d} bank_mask:0xf")
    a("s_branch L_kvflag")
    a.label("L_vfin")
    a(f"""s_lshl_b32 s54, s{sTB}, 2
    s_add_u32 s54, s54, s57
    s_mul_i32 s54, s54, 768
    s_add_u32 s54, s54, {WS_V}
    v_mul_u32_u24 v4, 384, v3
    v_lshl_add_u32 v4, v2, 4, v4
    v_mov_b32 v21, 0
    s_mov_b32 exec_lo, 0x100000
    s_mov_b32 exec_hi, 0x100000""")
    for i in range(4):
        a(f"v_mov_b32 v{16+i}, 0x3f803f80")
    a(f"""s_mov_b32 exec_lo, 0x1fffff
    s_mov_b32 exec_hi, 0x1fffff
    buffer_store_dwordx4 v[16:19], v4, {srd(WS)}, s54 offen sc1""")
    a.label("L_kvflag")
    a(f"""s_mov_b64 exec, 1
    v_mov_b32 v20, s{sN}
    s_waitcnt vmcnt(0)
    buffer_store_dwordx2 v[20:21], v1, {srd(WS)}, s58 offen sc1
    s_mov_b64 exec, -1""")

    a.label("L_kvpoll")
    stamp(3)
    a(f"""v_and_b32 v2, 31, v0
    v_lshlrev_b32 v3, 7, v2
    s_lshl_b32 s54, s{sW}, 12
    s_add_u32 s54, s54, {WS_FKV}
    v_lshlrev_b32 v4, 4, v0
    v_lshlrev_b32 v5, 3, v0
    v_lshrrev_b32 v6, 5, v0
    v_mul_u32_u24 v6, 384, v6
    v_lshl_add_u32 v6, v2, 4, v6
    v_mov_b32 v7, {OOB}
    v_cmp_lt_u32 vcc, 20, v2
    s_lshl_b32 s55, s{sW}, 13
    s_add_u32 s55, s55, {WS_K16}
    v_cndmask_b32 v6, v6, v7, vcc
    s_lshl_b32 s56, s{sW}, 11
    s_add_u32 s56, s56, {WS_K8}
    s_mul_i32 s57, s{sW}, 12288
    s_add_u32 s57, s57, {WS_V}""")
    poll(3, 54, 8, wide=True)
    stamp(4)
    KV = 56
    a("s_mov_b32 exec_hi, 0")
    for t in range(8):
        a(f"buffer_load_dwordx2 {vr(KV+14*t+4,2)}, v5, {srd(WS)}, s56 offen offset:{256*t} sc1")
    a("s_mov_b32 exec_hi, -1")
    for t in range(8):
        if t == 4:
            a("s_add_u32 s55, s55, 4096")
        if t and t % 2 == 0:
            a("s_add_u32 s57, s57, 3072")
        a(f"buffer_load_dwordx4 {vr(KV+14*t,4)}, v4, {srd(WS)}, s55 offen offset:{1024*(t%4)} sc1")
        a(f"buffer_load_dwordx4 {vr(KV+14*t+6,4)}, v6, {srd(WS)}, s57 offen offset:{1536*(t%2)} sc1")
        a(f"buffer_load_dwordx4 {vr(KV+14*t+10,4)}, v6, {srd(WS)}, s57 offen offset:{1536*(t%2)+768} sc1")
    a(f"""v_mov_b32 v3, {L_MISC}
    ds_max_u32 v3, v9 offset:{C_KMAX}
    s_mul_i32 s54, s{sW}, {QOB}
    s_add_u32 s54, s54, {L_QO}
    v_add_u32 v4, s54, v4
    v_mov_b64 v[8:9], 0
    v_mov_b64 v[10:11], 0""")
    a(f"""s_and_b32 s55, s{sW}, 1
    s_mul_i32 s55, s55, {32*336}
    s_lshr_b32 s56, s{sW}, 1
    s_mul_i32 s56, s56, 80
    s_add_u32 s55, s55, s56
    v_mul_u32_u24 v2, 336, v2
    v_add_u32 v2, s55, v2
    v_and_b32 v5, 32, v0
    v_add_u32 v5, v2, v5
    v_add_u32 v6, {2*RING}, v2
    v_add_u32 v7, {2*RING}, v5
    v_add_u32 v0, s54, v1
    s_waitcnt lgkmcnt(0)""")
    stamp(5)
    a("s_barrier")
    for i in range(4):
        a(f"ds_write_b128 v4, v[8:11] offset:{768 + 1024*i}")
    a("s_barrier")
    for p in range(4):
        hi, lo = (5, 2) if p < 2 else (7, 6)
        o = (p & 1) * RING
        a(f"ds_read_b128 {vr(8+12*p,4)}, v{hi} offset:{o}")
        a(f"ds_read_b128 {vr(12+12*p,4)}, v{hi} offset:{o+16}")
        a(f"ds_read_b128 {vr(16+12*p,4)}, v{lo} offset:{o+64}")
    a(f"s_mov_b32 s56, {fl(QSCALE)}\ns_waitcnt lgkmcnt(0)")
    for i in range(6):
        a(f"v_pk_add_f32 {vr(8+2*i,2)}, {vr(8+2*i,2)}, {vr(20+2*i,2)}")
        a(f"v_pk_add_f32 {vr(32+2*i,2)}, {vr(32+2*i,2)}, {vr(44+2*i,2)}")
    for i in range(6):
        a(f"v_pk_add_f32 {vr(8+2*i,2)}, {vr(8+2*i,2)}, {vr(32+2*i,2)}")
    for i in range(6):
        a(f"v_pk_mul_f32 {vr(8+2*i,2)}, {vr(8+2*i,2)}, s[56:57] op_sel_hi:[1,0]")
    a("v_pk_mul_f32 v[20:21], v[8:9], v[8:9]\nv_pk_mul_f32 v[22:23], v[16:17], v[16:17]")
    for i in range(1, 4):
        a(f"v_pk_fma_f32 v[20:21], {vr(8+2*i,2)}, {vr(8+2*i,2)}, v[20:21]")
    a("""v_pk_fma_f32 v[22:23], v[18:19], v[18:19], v[22:23]
    v_add_f32 v20, v20, v21
    v_add_f32 v22, v22, v23
    v_mov_b32 v21, v20""")
    for i in range(6):
        a(f"v_cvt_pk_bf16_f32 v{24+i}, v{8+2*i}, v{9+2*i}")
    a(f"""v_permlane32_swap_b32 v20, v21
    v_add_f32 v20, v20, v21
    v_add_f32 v20, v20, v22
    v_sqrt_f32 v20, v20
    ds_write2st64_b32 v0, v24, v25 offset0:0 offset1:1
    v_mul_f32 v20, {fl(1.01)}, v20
    ds_write2st64_b32 v0, v26, v27 offset0:2 offset1:3
    s_mov_b32 exec_lo, 0
    v_cvt_pk_bf16_f32 v28, -v20, 0
    v_mov_b32 v29, 0
    ds_max_u32 v3, v20 offset:{C_QMAX}
    s_mov_b32 exec_lo, -1
    ds_write2st64_b32 v0, v28, v29 offset0:4 offset1:5
    v_add_u32 v0, {L_QO}, v1
    v_mov_b32 v1, 0xdddddddd""")
    for i in range(8):
        a(f"v_mov_b64 {vr(40+2*i,2)}, 0")
    a("s_waitcnt lgkmcnt(0)")
    stamp(6)
    a("s_barrier")
    a(f"""ds_read_b64 v[8:9], v3 offset:{C_QMAX}
    ds_read2st64_b32 v[2:3], v0 offset0:0 offset1:1
    ds_read2st64_b32 v[4:5], v0 offset0:2 offset1:3
    ds_read2st64_b32 v[6:7], v0 offset0:4 offset1:5
    s_setprio 2
    s_waitcnt lgkmcnt(0)
    v_sqrt_f32 v9, v9
    v_mov_b32 v11, 0
    v_mul_f32 v9, {fl(1.01)}, v9
    v_mul_f32 v8, v8, v9
    v_cvt_pk_bf16_f32 v10, v9, 0
    v_cmp_nge_f32 vcc, {fl(SAFE_M)}, v8
    s_cbranch_vccnz L_truemax""")
    a.label("L_patch")
    a("s_mov_b32 exec_lo, 0")
    for t in range(8):
        a(f"v_mov_b64 {vr(KV+14*t+4,2)}, v[10:11]")
    a("s_mov_b32 exec_lo, -1\ns_mov_b32 s54, 0")

    S = [8, 24]
    O = 40

    def q1(t, buf):
        a(f"v_mfma_f32_32x32x16_bf16 {vr(buf,16)}, {vr(KV+14*t,4)}, v[2:5], 0")

    def q2(t, buf):
        a(f"v_mfma_f32_32x32x8_bf16 {vr(buf,16)}, {vr(KV+14*t+4,2)}, v[6:7], {vr(buf,16)}")

    def pv(t, half, buf):
        a(f"v_smfmac_f32_32x32x32_bf16 {vr(O,16)}, {vr(KV+14*t+6+4*half,4)}, {vr(buf+8*half,8)}, v1")

    def ex(buf, lo, hi, nohaz=False, wide=False):
        for i in range(lo, hi):
            a(f"v_exp_f32{'_e64' if wide and i == lo else ''} v{buf+i}, v{buf+i}", nohaz=nohaz)

    def part1(t, first=False):
        cur, nxt = S[t & 1], S[(t + 1) & 1]
        tn = (t + 1) % 8
        ex(cur, 0, 2, nohaz=not first)
        if not first:
            pv((t + 7) % 8, 1, nxt)
        ex(cur, 2, 6, nohaz=not first, wide=t > 0)
        if t == 7:
            a("s_waitcnt vmcnt(0) lgkmcnt(0)")
        elif t > 0 or first:
            a(f"s_waitcnt vmcnt({23-3*tn})")
        q1(tn, nxt)
        ex(cur, 6, 10)
        q2(tn, nxt)
        if t == 6:
            for i in range(3):
                a(f"ds_read2st64_b32 {vr(2+2*i,2)}, v0 offset0:{19+2*i} offset1:{20+2*i}")
        ex(cur, 10, 14)

    def part2(t):
        cur = S[t & 1]
        pv(t, 0, cur)
        ex(cur, 14, 16)

    def flush():
        for r in range(12):
            a(f"ds_add_f32 v0, v{O+r} offset:{(6+r)*256}")

    a("s_waitcnt vmcnt(23)")
    q1(0, S[0])
    q2(0, S[0])
    part1(0, first=True)
    a(".p2align 3")
    a.label("L_attn")
    part2(0)
    for t in range(1, 8):
        part1(t)
        part2(t)
    a("s_cmp_eq_u32 s54, 7\ns_cbranch_scc1 L_attn_tail")
    part1(0)
    flush()
    for i in range(6):
        a(f"ds_read2st64_b32 {vr(O+2*i,2)}, v0 offset0:18 offset1:18")
    a(f"""v_add_u32 v0, {QOB}, v0
    s_add_u32 s54, s54, 1
    s_cmp_lg_u32 s54, 4
    s_cbranch_scc1 L_np1
    s_setprio 1""")
    a.label("L_np1")
    a("s_cmp_lg_u32 s54, 7\ns_cbranch_scc1 L_np0\ns_setprio 0")
    a.label("L_np0")
    a("s_waitcnt lgkmcnt(0)\ns_branch L_attn")
    a.label("L_attn_tail")
    pv(7, 1, S[1])
    flush()
    a("s_waitcnt lgkmcnt(0)")
    stamp(7)
    arrive(C_A, 2, 3)
    lane(0)
    a(f"""v_and_b32 v4, 31, v0
    v_lshlrev_b32 v4, 2, v4
    v_lshrrev_b32 v5, 5, v0
    v_mul_u32_u24 v5, {QOB}, v5
    v_add_u32 v4, v4, v5
    v_lshlrev_b32 v5, 2, v0
    v_add_u32 v5, {L_MISC + M_G64}, v5
    v_lshrrev_b32 v6, 4, v0
    v_and_b32 v7, 15, v0
    v_lshlrev_b32 v7, 4, v7
    v_lshl_add_u32 v6, v6, 10, v7
    s_mov_b32 s60, s{sW}""")
    wait_cnt(C_A, 9, 2, 3)
    stamp(8)
    a("ds_read_b32 v7, v5")
    a.label("L_oep")
    for z in range(2):
        a(f"""s_lshl_b32 s54, s60, 1
        s_add_u32 s54, s54, {z}
        s_mul_i32 s55, s54, 52
        s_lshr_b32 s55, s55, 8
        s_mul_i32 s56, s55, 5
        s_sub_u32 s54, s54, s56
        s_mul_i32 s55, s55, {2*QOB}
        s_add_u32 s55, s55, {L_QO}
        s_lshr_b32 s56, s54, 1
        s_lshl_b32 s56, s56, 10
        s_and_b32 s54, s54, 1
        s_lshl_b32 s54, s54, 7
        s_add_u32 s54, s54, s56
        v_add_u32 v2, s55, v4
        v_add_u32 v3, s54, v2
        ds_read_b32 v{16+z}, v2 offset:{14*256+128}
        ds_read2st64_b32 {vr(8+4*z,2)}, v3 offset0:6 offset1:7
        ds_read2st64_b32 {vr(10+4*z,2)}, v3 offset0:8 offset1:9""")
    a(f"""s_mul_i32 s54, s{sCB}, 10
    s_add_u32 s54, s54, s60
    s_lshr_b32 s55, s54, 2
    s_lshl_b32 s55, s55, 12
    s_and_b32 s54, s54, 3
    s_lshl_b32 s54, s54, 8
    s_add_u32 s54, s54, s55
    s_mul_i32 s55, s{sTB}, 81920
    s_add_u32 s54, s54, s55
    s_add_u32 s54, s54, {WS_O}
    s_waitcnt lgkmcnt(0)
    v_rcp_f32 v16, v16
    v_rcp_f32 v17, v17
    s_add_u32 s60, s60, 8
    v_mul_f32 v16, v16, v7
    v_mul_f32 v18, v17, v7
    v_pk_mul_f32 v[8:9], v[8:9], v[16:17] op_sel_hi:[1,0]
    v_pk_mul_f32 v[10:11], v[10:11], v[16:17] op_sel_hi:[1,0]
    v_pk_mul_f32 v[12:13], v[12:13], v[18:19] op_sel_hi:[1,0]
    v_pk_mul_f32 v[14:15], v[14:15], v[18:19] op_sel_hi:[1,0]""")
    for i in range(4):
        a(f"v_cvt_pk_bf16_f32 v{20+i}, v{8+2*i}, v{9+2*i}")
    a(f"""buffer_store_dwordx4 v[20:23], v6, {srd(WS)}, s54 offen sc1
    s_cmp_lt_u32 s60, 10
    s_cbranch_scc1 L_oep
    s_lshl_b32 s54, s{sPID}, 7
    s_add_u32 s54, s54, {WS_FO}
    s_waitcnt vmcnt(0)""")
    arrive_flag(C_O, 7, 2, 3, 54)
    stamp(9)
    a("s_branch L_final")

    a.label("L_truemax")
    a("s_waitcnt vmcnt(0)\ns_mov_b32 exec_lo, 0")
    for t in range(8):
        a(f"v_mov_b64 {vr(KV+14*t+4,2)}, 0")
    a(f"""s_mov_b32 exec_lo, -1
    s_mov_b32 s54, 0
    v_mov_b32 v24, v0
    s_lshl_b32 s55, s{sW}, 10
    s_add_u32 s55, s55, {L_MROW}
    v_subrev_u32 v25, {L_QO}, v0
    v_and_b32 v25, 127, v25
    v_add_u32 v26, s55, v25""")
    a.label("L_tm")
    a("""ds_read2st64_b32 v[2:3], v24 offset0:0 offset1:1
    ds_read2st64_b32 v[4:5], v24 offset0:2 offset1:3
    ds_read2st64_b32 v[6:7], v24 offset0:4 offset1:5
    v_mov_b32 v27, 0xff800000
    s_waitcnt lgkmcnt(0)""")
    for t in range(8):
        q1(t, 8)
        q2(t, 8)
        for i in range(8):
            a(f"v_max3_f32 v27, v27, v{8+2*i}, v{9+2*i}")
    a(f"""v_mov_b32 v28, v27
    v_permlane32_swap_b32 v27, v28
    v_max_f32 v27, v27, v28
    ds_write_b32 v26, v27
    v_add_u32 v24, {QOB}, v24
    v_add_u32 v26, 128, v26
    s_add_u32 s54, s54, 1
    s_cmp_lt_u32 s54, 8
    s_cbranch_scc1 L_tm
    s_waitcnt lgkmcnt(0)""")
    arrive(C_F1, 2, 3)
    wait_cnt(C_F1, 8, 2, 3)
    a(f"""s_lshl_b32 s55, s{sW}, 7
    s_add_u32 s55, s55, {L_MROW}
    v_add_u32 v26, s55, v25""")
    for i in range(4):
        a(f"ds_read2st64_b32 {vr(8+2*i,2)}, v26 offset0:{8*i} offset1:{8*i+4}")
    a(f"""s_mul_i32 s55, s{sW}, {QOB}
    v_add_u32 v24, s55, v0
    s_waitcnt lgkmcnt(0)
    v_max3_f32 v8, v8, v9, v10
    v_max3_f32 v8, v8, v11, v12
    v_max3_f32 v8, v8, v13, v14
    v_max_f32 v8, v8, v15
    v_and_b32 v9, 0xffff0000, v8
    v_sub_f32 v8, v8, v9
    v_and_b32 v10, 0xffff0000, v8
    v_sub_f32 v8, v8, v10
    v_cvt_pk_bf16_f32 v9, -v9, -v10
    v_cvt_pk_bf16_f32 v10, -v8, 0
    s_mov_b32 exec_lo, 0
    ds_write2st64_b32 v24, v9, v10 offset0:4 offset1:5
    s_mov_b32 exec_lo, -1
    s_waitcnt lgkmcnt(0)""")
    arrive(C_F2, 2, 3)
    wait_cnt(C_F2, 8, 2, 3)
    a("""ds_read2st64_b32 v[2:3], v0 offset0:0 offset1:1
    ds_read2st64_b32 v[4:5], v0 offset0:2 offset1:3
    ds_read2st64_b32 v[6:7], v0 offset0:4 offset1:5
    v_mov_b32 v10, 0x3f803f80
    v_mov_b32 v11, 0x00003f80
    s_waitcnt lgkmcnt(0)
    s_branch L_patch""")

    ACC, FF, TF, XT = 16, 96, 116, 136
    vW = 136
    a.label("L_gemm")
    a(f"""s_setprio 3
    s_sub_u32 s{sW}, s{sW}, 8
    s_getpc_b64 s[54:55]""")
    a.label("L_pc")
    a(f"""s_sub_u32 s54, s54, L_pc-{NAME}_kernel
    s_subb_u32 s55, s55, 0
    s_lshl_b32 s56, s{sW}, 13
    v_lshlrev_b32 v1, 7, v0
    v_add_u32 v1, s56, v1
    v_min_u32 v1, L_end-{NAME}_kernel, v1
    global_load_dword v15, v1, s[54:55]
    s_cmp_ge_u32 s{sCB}, 4
    s_cselect_b64 s[{SA}:{SA+1}], s[{sWV_}:{sWV_+1}], s[{sWK}:{sWK+1}]
    s_mov_b32 s{SA+2}, 25600
    s_mov_b32 s{SA+3}, 0x00020000
    v_lshlrev_b32 v1, 4, v0
    v_lshlrev_b32 v2, 2, v0
    s_mul_i32 s54, s{sW}, 1280
    s_mul_i32 s58, s{sW}, 6400
    s_add_u32 s58, s58, {L_WKV}""")
    for i in range(5):
        a(f"s_add_u32 m0, s58, {1280*i}")
        if i:
            a("s_add_u32 s54, s54, 5120")
        a(f"buffer_load_dwordx4 v1, {srd(SA)}, s54 offen lds")
        a(f"buffer_load_dword v2, {srd(SA)}, s54 offen offset:1024 lds")
    mksrd(SB, sWQ, 819200)
    a(f"s_mul_i32 s54, s{sCB}, 160")
    for q in range(5):
        a(f"""v_add_u32 v3, {64*q}, v0
        v_mul_u32_u24 v4, 6554, v3
        v_lshrrev_b32 v4, 16, v4
        v_mul_u32_u24 v5, 10, v4
        v_sub_u32 v3, v3, v5
        v_bfe_u32 v5, v4, 2, 2
        v_lshrrev_b32 v6, 4, v4
        v_and_b32 v4, 3, v4
        v_lshl_add_u32 v4, v5, 3, v4
        v_lshl_add_u32 v4, v6, 2, v4
        v_mul_u32_u24 v4, 1280, v4
        v_lshl_add_u32 v4, v3, 4, v4
        v_add_u32 v{vW+q}, s54, v4""")
        if q in (1, 2, 3):
            a(f"v_subrev_u32 v{vW+q}, {1024*q}, v{vW+q}")

    def wslab(sr, sm0, imm, soff):
        L = [f"s_add_u32 m0, s{sm0}, {imm}"]
        for q in range(4):
            L.append(f"buffer_load_dwordx4 v{vW+q}, {srd(sr)}, s{soff} offen offset:{1024*q} lds")
        L.append(f"s_add_u32 m0, s{sm0}, {imm+4096}")
        L.append(f"buffer_load_dwordx4 v{vW+4}, {srd(sr)}, s{soff} offen lds")
        return L

    a(f"""s_mul_i32 s59, s{sW}, 10240
    s_add_u32 s59, s59, {L_WQ}
    s_mul_i32 s60, s{sW}, 40960""")
    a("\n".join(wslab(SB, 59, 0, 60)))
    a("s_add_u32 s60, s60, 163840")
    a("\n".join(wslab(SB, 59, 5120, 60)))
    a(f"""v_lshrrev_b32 v3, 4, v0
    v_and_b32 v4, 15, v0
    v_bfe_u32 v5, v0, 2, 2
    v_and_b32 v6, 3, v0
    s_lshl_b32 s54, s{sW}, 2
    v_add_u32 v7, s54, v3
    v_xor_b32 v7, v7, v4
    v_lshlrev_b32 v7, 4, v7
    v_lshl_add_u32 v7, v4, 8, v7
    v_add_u32 v8, 0x10000, v7
    s_and_b32 s54, s{sCB}, 3
    s_lshl_b32 s54, s54, 12
    v_add_u32 v11, s54, v7
    v_add_u32 v12, s54, v8
    v_lshl_add_u32 v9, v3, 2, v5
    v_mul_u32_u24 v9, 160, v9
    v_lshl_add_u32 v9, v6, 3, v9
    v_add_u32 v14, s59, v9
    v_lshl_add_u32 v10, v3, 3, v5
    v_mul_u32_u24 v10, 40, v10
    v_lshl_add_u32 v10, v6, 3, v10
    v_add_u32 v10, s58, v10
    s_cmp_ge_u32 s{sCB}, 4
    s_cselect_b32 s54, 5, 9
    s_lshl_b32 s54, s54, 4
    v_mul_u32_u24 v13, s54, v4
    v_lshl_add_u32 v13, v3, 4, v13
    v_add_u32 v13, s58, v13
    s_waitcnt vmcnt(10) lgkmcnt(0)""")
    nonce()
    stamp(1)
    a("s_barrier")
    for i in range(5):
        if i < 4:
            a(f"ds_read_b128 {vr(16+4*i,4)}, v11 offset:{16384*i}")
        else:
            a(f"ds_read_b128 {vr(16+4*i,4)}, v12")
        for b in range(2):
            for z in range(2):
                a(f"ds_read_b64_tr_b16 {vr(36+8*i+4*b+2*z,2)}, v10 offset:{1280*i+32*b+160*z}")
    a(f"s_cmp_ge_u32 s{sCB}, 4\ns_waitcnt lgkmcnt(0)\ns_cbranch_scc1 L_vpart")
    for i in range(5):
        for b in range(2):
            c = "0" if i == 0 else vr(80+4*b, 4)
            a(f"v_mfma_f32_16x16x32_bf16 {vr(80+4*b,4)}, {vr(36+8*i+4*b,4)}, {vr(16+4*i,4)}, {c}")
    a("ds_write_b128 v13, v[80:83]\nds_write_b128 v13, v[84:87] offset:64\ns_branch L_kvpd")
    a.label("L_vpart")
    for i in range(5):
        for b in range(2):
            c = "0" if i == 0 else vr(80+4*b, 4)
            a(f"v_mfma_f32_16x16x32_bf16 {vr(80+4*b,4)}, {vr(16+4*i,4)}, {vr(36+8*i+4*b,4)}, {c}")
    a("ds_write_b128 v13, v[80:83]\nds_write_b128 v13, v[84:87] offset:1280")
    a.label("L_kvpd")
    a("s_waitcnt lgkmcnt(0)")
    stamp(2)
    a("s_barrier")

    def acc(i5, i4):
        return vr(ACC + 4 * (i5 * 4 + i4), 4)

    def interleave(ms, extra):
        k = 0
        for i, m in enumerate(ms):
            a(m)
            if k < len(extra):
                a(extra[k])
                k += 1
        for e in extra[k:]:
            a(e)

    for i in range(5):
        a(f"s_waitcnt vmcnt({5 if i < 4 else 0})")
        for b in range(4):
            if i < 4:
                a(f"ds_read_b128 {vr(FF+4*b,4)}, v7 offset:{16384*i+4096*b}")
            else:
                a(f"ds_read_b128 {vr(FF+4*b,4)}, v8 offset:{4096*b}")
        for n in range(5):
            for z in range(2):
                a(f"ds_read_b64_tr_b16 {vr(TF+4*n+2*z,2)}, v14 offset:{(i&1)*5120+32*n+2560*z}")
        extra = []
        if i < 3:
            a("s_add_u32 s60, s60, 163840")
            extra = wslab(SB, 59, (i & 1) * 5120, 60)
        a("s_waitcnt lgkmcnt(0)")
        ms = [f"v_mfma_f32_16x16x32_bf16 {acc(n,b)}, {vr(TF+4*n,4)}, {vr(FF+4*b,4)}, {'0' if i == 0 else acc(n,b)}"
              for n in range(5) for b in range(4)]
        interleave(ms, extra)
    a(f"""s_mul_i32 s58, s{sW}, {RING}
    v_mul_u32_u24 v2, 336, v4
    v_lshl_add_u32 v2, v3, 4, v2
    v_add_u32 v2, s58, v2
    v_add_u32 v14, s58, v9""")
    stamp(3)
    a("s_barrier")

    def write_part_ts():
        for n in range(5):
            for b in range(4):
                a(f"ds_write_b128 v2, {acc(n,b)} offset:{5376*b+64*n}")

    write_part_ts()
    a("s_waitcnt lgkmcnt(0)\ns_barrier")
    vT = 141
    a(f"""v_add_u32 v7, s58, v1
    v_add_u32 v12, 4096, v1
    v_lshl_add_u32 v9, v3, 2, v5
    v_bfe_u32 v10, v9, 1, 2
    v_lshlrev_b32 v9, 7, v9
    v_lshl_add_u32 v9, v6, 3, v9
    s_add_u32 s54, s58, 5120
    v_add_u32 v13, s54, v9""")
    a("v_mov_b32 v145, v10")
    for b in range(4):
        a(f"v_xor_b32 v146, {b}, v145\nv_lshl_add_u32 v{8+b}, v146, 5, v13")
    a("""v_lshrrev_b32 v13, 3, v0
    v_bfe_u32 v146, v0, 1, 2
    v_bfe_u32 v147, v13, 1, 2
    v_xor_b32 v146, v146, v147
    v_and_b32 v147, 1, v0
    v_lshlrev_b32 v147, 4, v147
    v_lshl_add_u32 v146, v146, 5, v147
    v_lshrrev_b32 v145, 2, v13
    v_and_b32 v13, 3, v13
    v_lshl_add_u32 v145, v145, 3, v13""")

    def tsrc(stride):
        a(f"v_mul_u32_u24 v13, {stride}, v145\nv_add_u32 v13, v13, v146")
        for q in range(4):
            off = (16 * (q & 1) + 4 * (q >> 1)) * stride - (1024 * (q + 1) if q < 3 else 0) + 1024
            a(f"v_add_u32 v{vT+q}, {off}, v13")

    def dma_f(slot):
        L = [f"s_add_u32 m0, s58, {slot*9216}"]
        for q in range(4):
            L.append(f"buffer_load_dwordx4 v1, {srd(SA)}, s60 offen offset:{1024*q} sc1 lds")
        L.append(f"s_add_u32 m0, s58, {slot*9216+4096}")
        L.append(f"buffer_load_dwordx4 v12, {srd(SA)}, s60 offen sc1 lds")
        return L

    def dma_t(slot, setm0):
        L = [f"s_add_u32 m0, s58, {slot*9216+4096}"] if setm0 else []
        for q in range(3):
            L.append(f"buffer_load_dwordx4 v{vT+q}, {srd(SB)}, s61 offen offset:{1024*(q+1)} lds")
        L.append(f"s_add_u32 m0, s58, {slot*9216+8192}")
        L.append(f"buffer_load_dwordx4 v{vT+3}, {srd(SB)}, s61 offen lds")
        return L

    def mksrd_biased(r, p, size):
        a(f"s_sub_u32 s{r}, s{p}, 1024\ns_subb_u32 s{r+1}, s{p+1}, 0\ns_mov_b32 s{r+2}, {size+1024}\n"
          f"s_mov_b32 s{r+3}, 0x00020000")

    def gemm_loop(tag, tstep, t_is_a):
        a("s_waitcnt vmcnt(5)")
        a.label(f"L_{tag}")
        for slot in range(3):
            a("s_waitcnt vmcnt(18)")
            for b in range(4):
                for z in range(2):
                    a(f"ds_read_b64_tr_b16 {vr(TF+4*b+2*z,2)}, v{8+b} offset:{slot*9216+2048*z}")
            for j in range(5):
                a(f"ds_read_b128 {vr(FF+4*j,4)}, v7 offset:{slot*9216+1024*j}")
            a(f"""s_cmp_le_u32 s62, 3
            s_cselect_b32 s{SA+2}, 0, s{SA+2}
            s_cselect_b32 s{SB+2}, 0, s{SB+2}
            s_waitcnt lgkmcnt(0)""")
            ms = []
            for j in range(5):
                for b in range(4):
                    x, y = (vr(TF+4*b, 4), vr(FF+4*j, 4)) if t_is_a else (vr(FF+4*j, 4), vr(TF+4*b, 4))
                    ms.append(f"v_mfma_f32_16x16x32_bf16 {acc(j,b)}, {x}, {y}, {acc(j,b)}")
            extra = dma_f(slot) + dma_t(slot, False) + ["s_add_u32 s60, s60, 40960", f"s_add_u32 s61, s61, {tstep}",
                                                       "s_sub_u32 s62, s62, 1", "s_cmp_eq_u32 s62, 0"]
            interleave(ms, extra)
            if slot < 2:
                a(f"s_cbranch_scc1 L_{tag}_done")
            else:
                a(f"s_cbranch_scc0 L_{tag}")
        a.label(f"L_{tag}_done")
        a("s_waitcnt vmcnt(0)\ns_nop 7")

    def pre_t(tstep):
        for slot in range(3):
            a("\n".join(dma_t(slot, True)))
            a(f"s_add_u32 s61, s61, {tstep}")

    def pre_f():
        for slot in range(3):
            a("\n".join(dma_f(slot)))
            a("s_add_u32 s60, s60, 40960")

    tsrc(3456)
    mksrd(SA, sWS, WS_SIZE)
    mksrd_biased(SB, sW1, 7077888)
    mksrd(SC, sB1, 3456)
    a(f"""s_cmp_eq_u32 s{sW}, 0
    s_cselect_b32 s{SC+2}, s{SC+2}, 0
    s_lshl_b32 s54, s{sFB}, 7
    v_lshlrev_b32 v13, 3, v3""")
    for b in range(4):
        a(f"buffer_load_dwordx2 {vr(FF+2*b,2)}, v13, {srd(SC)}, s54 offen offset:{32*b}")
    a(f"""s_mul_i32 s61, s{sW}, {16*32*3456}
    s_add_u32 s61, s61, s54
    s_mul_i32 s60, s{sW}, {16*40960}
    s_mul_i32 s54, s{sCB}, 5120
    s_add_u32 s60, s60, s54
    s_add_u32 s60, s60, {WS_HT}
    s_mov_b32 s62, 16""")
    stamp(4)
    a("s_barrier")
    a(f"s_cmp_ge_u32 s{sFB}, 27\ns_cbranch_scc1 L_nopre")
    pre_t(32 * 3456)
    a.label("L_nopre")
    a(f"s_cmp_lg_u32 s{sW}, 0\ns_cbranch_scc1 L_nog")
    a(f"""v_lshrrev_b32 v13, 3, v0
    v_and_b32 v15, 7, v0
    v_lshlrev_b32 v15, 2, v15
    v_lshl_add_u32 v13, v13, 7, v15
    s_lshl_b32 s54, s{sTB}, 10
    s_add_u32 s54, s54, {WS_G}
    buffer_load_dword v15, v13, {srd(WS)}, s54 offen sc1
    v_lshlrev_b32 v13, 2, v0
    v_add_u32 v13, {L_MISC + M_G64}, v13
    s_waitcnt vmcnt(0)
    ds_write_b32 v13, v15
    s_waitcnt lgkmcnt(0)""")
    arrive(C_A, 13, 15)
    a(f"""s_cmp_lg_u32 s2, 0
    s_cbranch_scc1 L_nog
    s_mov_b64 exec, 1
    v_mov_b32 v15, s{sN}
    buffer_store_dword v15, v1, {srd(WS)}, 0 offen sc1
    s_mov_b64 exec, -1""")
    a.label("L_nog")
    a(f"s_cmp_ge_u32 s{sFB}, 27\ns_cbranch_scc1 L_g2")
    a(f"""v_lshlrev_b32 v13, 7, v0
    s_lshl_b32 s54, s{sW}, 13
    s_add_u32 s54, s54, {WS_FH}""")
    poll(13, 54, 15)
    stamp(5)
    pre_f()
    for b in range(4):
        for z in range(2):
            a(f"v_lshlrev_b32 v{ACC+4*b+2*z}, 16, v{FF+2*b+z}\nv_and_b32 v{ACC+4*b+2*z+1}, 0xffff0000, v{FF+2*b+z}")
    for j in range(1, 5):
        for i in range(8):
            a(f"v_mov_b64 {vr(ACC+16*j+2*i,2)}, {vr(ACC+2*i,2)}")
    gemm_loop("g1", 32 * 3456, True)
    stamp(6)
    a("""v_mul_u32_u24 v13, 272, v4
    v_lshl_add_u32 v15, v3, 4, v13
    v_add_u32 v15, s58, v15""")
    for j in range(5):
        for b in range(4):
            a(f"ds_write_b128 v15, {acc(j,b)} offset:{4352*j+64*b}")
    a(f"""s_and_b32 s55, s{sW}, 1
    s_lshr_b32 s56, s{sW}, 1
    s_lshl_b32 s54, s55, 7
    s_mul_i32 s57, s56, 4352
    s_add_u32 s57, s57, s54
    v_lshl_add_u32 v13, v3, 5, v13
    v_add_u32 v148, s57, v13
    v_add_u32 v149, {2*RING}, v148
    s_lshl_b32 s57, s56, 6
    s_add_u32 s57, s57, s54
    s_add_u32 s57, s57, {4*4352}
    v_bfe_u32 v13, v0, 1, 4
    v_mul_u32_u24 v13, 272, v13
    v_and_b32 v15, 32, v0
    v_add3_u32 v13, v13, v15, v147
    v_add_u32 v150, s57, v13
    v_add_u32 v151, {2*RING}, v150
    s_waitcnt lgkmcnt(0)""")
    arrive(C_G1A, 13, 15)
    wait_cnt(C_G1A, 4, 13, 15)
    for p in range(4):
        o = (p & 1) * RING
        r8, r4 = (148, 150) if p < 2 else (149, 151)
        for rd in range(2):
            a(f"ds_read_b128 {vr(ACC+20*p+8*rd,4)}, v{r8} offset:{o+8704*rd}")
            a(f"ds_read_b128 {vr(ACC+20*p+8*rd+4,4)}, v{r8} offset:{o+8704*rd+16}")
        a(f"ds_read_b128 {vr(ACC+20*p+16,4)}, v{r4} offset:{o}")
    c1 = -2.0 * math.sqrt(2.0 / math.pi) * math.log2(math.e)
    a(f"""s_lshl_b32 s54, s{sFB}, 1
    s_add_u32 s54, s54, s55
    s_mul_i32 s54, s54, 40960
    s_mul_i32 s55, s{sCB}, 5120
    s_add_u32 s54, s54, s55
    s_add_u32 s54, s54, {WS_U}
    s_lshl_b32 s55, s56, 9
    s_add_u32 s55, s55, s54
    s_add_u32 s55, s55, 4096
    s_lshl_b32 s56, s56, 10
    s_add_u32 s54, s54, s56
    s_mov_b32 s56, {fl(c1 * 0.044715)}
    v_mov_b32 v148, {fl(c1)}
    v_lshlrev_b32 v13, 3, v0
    s_waitcnt lgkmcnt(0)""")
    for i in range(10):
        a(f"v_pk_add_f32 {vr(ACC+2*i,2)}, {vr(ACC+2*i,2)}, {vr(ACC+20+2*i,2)}")
        a(f"v_pk_add_f32 {vr(ACC+40+2*i,2)}, {vr(ACC+40+2*i,2)}, {vr(ACC+60+2*i,2)}")
    X, T = ACC, ACC + 20
    for i in range(10):
        a(f"v_pk_add_f32 {vr(X+2*i,2)}, {vr(X+2*i,2)}, {vr(ACC+40+2*i,2)}")
    for i in range(10):
        a(f"v_pk_mul_f32 {vr(T+2*i,2)}, {vr(X+2*i,2)}, {vr(X+2*i,2)}")
    for i in range(10):
        a(f"v_pk_fma_f32 {vr(T+2*i,2)}, {vr(T+2*i,2)}, s[56:57], v[148:149] op_sel_hi:[1,0,0]")
    for i in range(10):
        a(f"v_pk_mul_f32 {vr(T+2*i,2)}, {vr(T+2*i,2)}, {vr(X+2*i,2)}")
    for i in range(20):
        a(f"v_exp_f32 v{T+i}, v{T+i}")
    for i in range(10):
        a(f"v_pk_add_f32 {vr(T+2*i,2)}, {vr(T+2*i,2)}, 1.0 op_sel_hi:[1,0]")
    for i in range(20):
        a(f"v_rcp_f32 v{T+i}, v{T+i}")
    for i in range(10):
        a(f"v_pk_mul_f32 {vr(X+2*i,2)}, {vr(X+2*i,2)}, {vr(T+2*i,2)}")
    for i in range(10):
        a(f"v_cvt_pk_bf16_f32 v{FF+i}, v{X+2*i}, v{X+2*i+1}")
    a(f"""buffer_store_dwordx4 {vr(FF,4)}, v1, {srd(WS)}, s54 offen sc1
    buffer_store_dwordx4 {vr(FF+4,4)}, v1, {srd(WS)}, s54 offen offset:2048 sc1
    buffer_store_dwordx2 {vr(FF+8,2)}, v13, {srd(WS)}, s55 offen sc1
    s_lshl_b32 s54, s{sCB}, 5
    s_add_u32 s54, s54, s{sFB}
    s_lshl_b32 s54, s54, 7
    s_add_u32 s54, s54, {WS_FU}
    s_waitcnt vmcnt(0)""")
    arrive_flag(C_G1B, 3, 13, 15, 54)
    wait_cnt(C_G1B, 4, 13, 15)
    a.label("L_g2")
    stamp(7)
    tsrc(4096)
    mksrd(SA, sWS, WS_SIZE)
    mksrd_biased(SB, sW2, 7077888)
    mksrd(SC, sB2, 4096)
    a(f"""s_cmp_eq_u32 s{sW}, 0
    s_cselect_b32 s{SC+2}, s{SC+2}, 0
    s_mul_i32 s55, s{sW}, 14
    s_cmp_eq_u32 s{sW}, 3
    s_cselect_b32 s55, 41, s55
    s_lshr_b32 s62, s{sW}, 1
    s_sub_u32 s62, 14, s62
    s_lshl_b32 s54, s{sTB}, 7
    s_lshl_b32 s61, s55, 17
    s_add_u32 s61, s61, s54
    s_mul_i32 s60, s55, 40960
    s_mul_i32 s55, s{sCB}, 5120
    s_add_u32 s60, s60, s55
    s_add_u32 s60, s60, {WS_U}""")
    pre_t(32 * 4096)
    a(f"""v_lshlrev_b32 v13, 1, v4
    v_lshrrev_b32 v15, 3, v4
    v_and_b32 v148, 7, v4
    v_lshlrev_b32 v148, 2, v148
    v_lshl_add_u32 v15, v15, 7, v148
    s_lshl_b32 s55, s{sTB}, 10
    s_add_u32 s55, s55, {WS_G}""")
    for b in range(4):
        a(f"buffer_load_ushort v{FF+b}, v13, {srd(SC)}, s54 offen offset:{32*b}")
        a(f"buffer_load_dword v{148+2*b}, v15, {srd(WS)}, s55 offen offset:{256*b} sc1")
    a(f"""v_min_u32 v13, 26, v0
    v_lshlrev_b32 v13, 7, v13
    s_lshl_b32 s54, s{sCB}, 12
    s_add_u32 s54, s54, {WS_FU}""")
    poll(13, 54, 15)
    stamp(8)
    pre_f()
    for b in range(4):
        a(f"v_lshlrev_b32 v{ACC+4*b}, 16, v{FF+b}\nv_lshlrev_b32 v{ACC+4*b+1}, 16, v{FF+b}")
        a(f"v_sub_f32 v{148+2*b}, 1.0, v{148+2*b}")
    for j in range(5):
        for b in range(4):
            for z in range(2):
                if j or z:
                    a(f"v_mov_b64 {vr(ACC+16*j+4*b+2*z,2)}, {vr(ACC+4*b,2)}")
    gemm_loop("g2l", 32 * 4096, False)
    stamp(9)
    mksrd(SB, sWO, 819200)
    a(f"s_mul_i32 s60, s{sW}, {5*40960}")
    for i in range(5):
        a("\n".join(wslab(SB, 58, i * 5120, 60)))
        a("s_add_u32 s60, s60, 40960")
    for j in range(5):
        for b in range(4):
            for z in range(2):
                r = vr(ACC+16*j+4*b+2*z, 2)
                a(f"v_pk_mul_f32 {r}, {r}, {vr(148+2*b,2)} op_sel_hi:[1,0]")
    a(f"""v_and_b32 v13, 1, v0
    v_lshlrev_b32 v13, 7, v13
    s_lshl_b32 s54, s{sTB}, 10
    s_lshl_b32 s55, s{sW}, 8
    s_add_u32 s54, s54, s55
    s_add_u32 s54, s54, {WS_FO}
    s_mul_i32 s60, s{sTB}, 81920
    s_mul_i32 s55, s{sW}, 20480
    s_add_u32 s60, s60, s55
    s_add_u32 s60, s60, {WS_O}""")
    poll(13, 54, 15)
    stamp(10)
    OB = [FF, XT, XT + 16]

    def oload(i):
        return [f"buffer_load_dwordx4 {vr(OB[i%3]+4*b,4)}, v1, {srd(WS)}, s60 offen offset:{1024*b} sc1" for b in range(4)] + \
               ["s_add_u32 s60, s60, 4096"]

    for i in range(3):
        a("\n".join(oload(i)))
    for i in range(5):
        for n in range(5):
            for z in range(2):
                a(f"ds_read_b64_tr_b16 {vr(TF+4*n+2*z,2)}, v14 offset:{i*5120+32*n+2560*z}")
        a(f"s_waitcnt vmcnt({[8,8,8,4,0][i]}) lgkmcnt(0)")
        for n in range(5):
            for b in range(4):
                a(f"v_mfma_f32_16x16x32_bf16 {acc(n,b)}, {vr(TF+4*n,4)}, {vr(OB[i%3]+4*b,4)}, {acc(n,b)}")
        if i < 2:
            a("\n".join(oload(i + 3)))
    write_part_ts()
    a(f"s_add_u32 s{sW}, s{sW}, 8\ns_waitcnt lgkmcnt(0)")
    stamp(11)

    a.label("L_final")
    mksrd(SA, sOUT, 2621440)
    a(f"""s_lshl_b32 s54, s{sW}, 6
    v_add_u32 v1, s54, v0
    v_mul_u32_u24 v2, 6554, v1
    v_lshrrev_b32 v2, 16, v2
    v_mul_u32_u24 v3, 10, v2
    v_sub_u32 v1, v1, v3
    v_mul_u32_u24 v3, 336, v2
    v_lshl_add_u32 v3, v1, 5, v3
    v_add_u32 v4, {2*RING}, v3
    v_mul_u32_u24 v2, 1280, v2
    v_lshl_add_u32 v2, v1, 4, v2
    s_mul_i32 s54, s{sTB}, 81920
    s_mul_i32 s55, s{sCB}, 160
    s_add_u32 s54, s54, s55
    s_barrier
    s_cmp_ge_u32 s{sW}, 10
    s_cbranch_scc1 L_fin2""")
    for p in range(4):
        a(f"ds_read_b128 {vr(8+8*p,4)}, v{3+(p>>1)} offset:{(p&1)*RING}")
        a(f"ds_read_b128 {vr(12+8*p,4)}, v{3+(p>>1)} offset:{(p&1)*RING+16}")
    a("s_waitcnt lgkmcnt(0)")
    for i in range(4):
        a(f"v_pk_add_f32 {vr(8+2*i,2)}, {vr(8+2*i,2)}, {vr(16+2*i,2)}")
        a(f"v_pk_add_f32 {vr(24+2*i,2)}, {vr(24+2*i,2)}, {vr(32+2*i,2)}")
    for i in range(4):
        a(f"v_pk_add_f32 {vr(8+2*i,2)}, {vr(8+2*i,2)}, {vr(24+2*i,2)}")
    for i in range(4):
        a(f"v_cvt_pk_bf16_f32 v{16+i}, v{8+2*i}, v{9+2*i}")
    a(f"buffer_store_dwordx4 v[16:19], v2, {srd(SA)}, s54 offen")
    a.label("L_fin2")
    if profile:
        a("s_waitcnt vmcnt(0)")
        stamp(12)
        a("s_memrealtime s[94:95]\ns_waitcnt lgkmcnt(0)")
        for k in range(16):
            a(f"v_mov_b32 v{20+k}, s{64+2*k}")
        a(f"""s_mul_i32 s54, s2, 12
        s_add_u32 s54, s54, s{sW}
        s_lshl_b32 s54, s54, 6
        s_add_u32 s54, s54, {WS_PROF}
        v_mov_b32 v1, 0
        s_mov_b64 exec, 1""")
        for k in range(4):
            a(f"buffer_store_dwordx4 {vr(20+4*k,4)}, v1, {srd(WS)}, s54 offen offset:{16*k}")
    a.label("L_end")
    a("s_endpgm")
    a.pad()

    head = open(f"cdna_kernels/{NAME}.s.ref").read().split("; @launch")[0]
    src = head + f"""; @launch grid=(256,1,1) block=(768,1,1) lds={LDS_SIZE}
.amdgcn_target "amdgcn-amd-amdhsa--gfx950"
.text
.globl {NAME}_kernel
.p2align 8
.type {NAME}_kernel,@function
{NAME}_kernel:
""" + a.text() + f""".section .rodata,"a"
.p2align 6
.amdhsa_kernel {NAME}_kernel
  .amdhsa_next_free_vgpr 168
  .amdhsa_next_free_sgpr 102
  .amdhsa_accum_offset 168
  .amdhsa_group_segment_fixed_size 0
  .amdhsa_kernarg_size 112
  .amdhsa_user_sgpr_count 2
  .amdhsa_user_sgpr_kernarg_segment_ptr 1
  .amdhsa_system_sgpr_workgroup_id_x 1
.end_amdhsa_kernel
"""
    return src


if __name__ == "__main__":
    open(f"cdna_kernels/{NAME}.s", "w").write(gen(False))
    open("prof.s", "w").write(gen(True))
    print("ok")
```

```python
import sys, struct, math
sys.path.insert(0, "gen")
from asmlib import Asm

NAME = "gated_mix__grouped_kv_mqa__mixer_token_mlp__prompt"


def f2u(x):
    return struct.unpack("<I", struct.pack("<f", x))[0]


def fl(x):
    return "0x%08x" % f2u(x)


WS_FKV, WS_FH, WS_FU, WS_FO, WS_G = 0x08000, 0x10000, 0x18000, 0x20000, 0x28000
WS_KV = 0x40000
WS_HT, WS_U, WS_O = 0x100000, 0x400000, 0x700000
WS_PROF = 0xA00000
WS_SIZE = 0xB00000
OOB = 0x40000000
NW = 8

L_LNS, L_PW, PW = 81920, 92672, 16640
L_QF, L_MROW = 0, 16384
L_OX = 0
L_G, GR = 73728, 21760
L_MISC = 163328
C_H, C_G1A, C_G1B, C_X, C_P, C_Q, C_V, C_D, C_O, C_F1 = 0, 4, 8, 12, 16, 20, 24, 28, 40, 44
C_QMAX, C_KMAX = 32, 36
M_G8, M_G64 = 64, 128
LDS_SIZE = 163840

sX, sWQ, sWK, sWV_, sWO, sW1, sB1, sW2, sB2, sGW, sOUT, sWS = 4, 6, 8, 10, 12, 16, 18, 20, 22, 24, 26, 30
WS, SA, SB, SC = 32, 36, 40, 44
sW, sCB, sTB, sPID, sN, sFB = 48, 49, 50, 51, 52, 53
SPIN_MAX = 1 << 15

QSCALE = math.log2(math.e) / math.sqrt(20.0)
SAFE_B = 40.0

DEFAULTS = dict(p_g0=2, p_g1=2, p_g1e=2, p_g2=0, p_a=1)


def gen(profile=False, opt=None):
    o = dict(DEFAULTS)
    o.update(opt or {})
    a = Asm()

    def srd(r):
        return f"s[{r}:{r+3}]"

    def mksrd(r, p, size):
        a(f"s_mov_b32 s{r}, s{p}\ns_mov_b32 s{r+1}, s{p+1}\ns_mov_b32 s{r+2}, {size}\ns_mov_b32 s{r+3}, 0x00020000")

    def stamp(k):
        if profile:
            a(f"s_memtime s[{64+2*k}:{65+2*k}]")

    def lg(n):
        return f"lgkmcnt({0 if profile else n})"

    def vr(b, n):
        return f"v[{b}:{b+n-1}]"

    def lane(v):
        a(f"v_mbcnt_lo_u32_b32 v{v}, -1, 0\nv_mbcnt_hi_u32_b32 v{v}, -1, v{v}")

    def arrive(cnt, va, vb):
        a(f"""s_mov_b64 exec, 1
        v_mov_b32 v{va}, {L_MISC}
        v_mov_b32 v{vb}, 1
        ds_add_u32 v{va}, v{vb} offset:{cnt}
        s_mov_b64 exec, -1""")

    def arrive_flag(cnt, last, va, vb, soff):
        skip = a.newlabel("nf")
        a(f"""s_mov_b64 exec, 1
        v_mov_b32 v{va}, {L_MISC}
        v_mov_b32 v{vb}, 1
        ds_add_rtn_u32 v{vb}, v{va}, v{vb} offset:{cnt}
        v_mov_b32 v{va}, 0
        s_waitcnt lgkmcnt(0)
        v_readfirstlane_b32 s96, v{vb}
        v_mov_b32 v{vb}, s{sN}
        s_cmp_lg_u32 s96, {last}
        s_cbranch_scc1 {skip}
        buffer_store_dword v{vb}, v{va}, {srd(WS)}, s{soff} offen sc1""")
        a.label(skip)
        a("s_mov_b64 exec, -1")

    def wait_cnt(cnt, target, va, vb, sleep=0):
        lp, dn = a.newlabel("wc"), a.newlabel("wd")
        a(f"v_mov_b32 v{va}, {L_MISC}\ns_mov_b32 s97, 0")
        a.label(lp)
        a(f"""ds_read_b32 v{vb}, v{va} offset:{cnt}
        s_add_u32 s97, s97, 1
        s_waitcnt lgkmcnt(0)
        v_readfirstlane_b32 s96, v{vb}
        s_cmp_ge_u32 s96, {target}
        s_cbranch_scc1 {dn}""")
        if sleep:
            a(f"s_sleep {sleep}")
        a(f"s_cmp_lt_u32 s97, {SPIN_MAX * 16}\ns_cbranch_scc1 {lp}")
        a.label(dn)

    def poll(voff, soff, vd, wide=False):
        lp, dn = a.newlabel("pl"), a.newlabel("pd")
        a("s_mov_b32 s97, 0")
        a.label(lp)
        if wide:
            a(f"buffer_load_dwordx2 {vr(vd,2)}, v{voff}, {srd(WS)}, s{soff} offen sc1")
        else:
            a(f"buffer_load_dword v{vd}, v{voff}, {srd(WS)}, s{soff} offen sc1")
        a(f"""s_add_u32 s97, s97, 1
        s_waitcnt vmcnt(0)
        v_cmp_ne_u32 vcc, s{sN}, v{vd}
        s_cbranch_vccz {dn}
        s_sleep 1
        s_cmp_lt_u32 s97, {SPIN_MAX}
        s_cbranch_scc1 {lp}""")
        a.label(dn)

    def nonce():
        a(f"s_mul_i32 s{sN}, s{sN}, 0x9E3779B1\ns_add_u32 s{sN}, s{sN}, 0x7F4A7C15")

    ROR = ["row_ror:8", "row_ror:4", "row_ror:2", "row_ror:1"]

    a(f"""s_cmp_ge_u32 s2, 256
    s_cbranch_scc1 L_end
    s_load_dwordx16 s[4:19], s[0:1], 0
    s_load_dwordx8 s[20:27], s[0:1], 64
    s_load_dwordx4 s[28:31], s[0:1], 96""")
    if profile:
        a("s_memrealtime s[92:93]")
    stamp(0)
    a("s_getpc_b64 s[58:59]")
    a.label("L_pc")
    a(f"""v_lshrrev_b32 v1, 6, v0
    s_and_b32 s54, s2, 0xf8
    v_add_u32 v2, s54, v1
    v_lshlrev_b32 v2, 7, v2
    v_min_u32 v2, L_end-L_pc, v2
    global_load_dword v255, v2, s[58:59]
    v_and_b32 v0, 63, v0
    v_readfirstlane_b32 s{sW}, v1
    s_lshr_b32 s54, s2, 3
    s_and_b32 s55, s2, 1
    s_lshl_b32 s55, s55, 2
    s_and_b32 s56, s54, 3
    s_add_u32 s{sCB}, s55, s56
    s_bfe_u32 s55, s2, 0x20001
    s_lshr_b32 s54, s54, 2
    s_lshl_b32 s56, s55, 3
    s_add_u32 s{sTB}, s56, s54
    s_mul_i32 s55, s55, 7
    s_add_u32 s{sFB}, s55, s54
    s_cmp_eq_u32 s54, 7
    s_cselect_b32 s{sFB}, 99, s{sFB}
    s_lshl_b32 s{sPID}, s{sTB}, 3
    s_add_u32 s{sPID}, s{sPID}, s{sCB}
    s_cmp_ge_u32 s{sW}, 4
    s_cbranch_scc1 L_gemm""")

    a(f"""v_lshrrev_b32 v1, 4, v0
    v_and_b32 v4, 15, v0
    v_xor_b32 v4, v4, v1
    v_mul_u32_u24 v1, 1280, v1
    s_lshl_b32 s54, s{sW}, 2
    v_xor_b32 v5, s54, v4
    v_lshl_add_u32 v2, v5, 4, v1
    s_lshr_b32 s57, s{sCB}, 1
    s_lshl_b32 s55, s57, 2
    s_add_u32 s55, s55, s{sW}
    s_mul_i32 s54, s55, 5120
    s_mul_i32 s56, s{sTB}, 81920
    s_add_u32 s54, s54, s56
    s_lshl_b32 s55, s55, 10
    s_waitcnt lgkmcnt(0)
    s_load_dword s{sN}, s[{sWS}:{sWS+1}], 0""")
    mksrd(SA, sX, 2621440)
    for cg in range(5):
        a(f"s_add_u32 m0, s55, {cg*16128}")
        a(f"buffer_load_dwordx4 v2, {srd(SA)}, s54 offen offset:{cg*256} lds")
    mksrd(SB, sGW, 1280)
    a("v_and_b32 v3, 31, v0\nv_lshlrev_b32 v3, 3, v3")
    for i in range(5):
        a(f"buffer_load_dwordx2 {vr(10+2*i,2)}, v3, {srd(SB)}, 0 offen offset:{256*i}")
    mksrd(WS, sWS, WS_SIZE)
    a(f"s_cmp_eq_u32 s{sW}, 0\ns_cbranch_scc1 L_nox2")
    a(f"""s_add_u32 s57, s57, s{sW}
    s_and_b32 s57, s57, 3
    s_mul_i32 s54, s57, 20480
    s_add_u32 s54, s54, s56
    s_lshl_b32 s55, s57, 12""")
    for j in range(4):
        a(f"v_xor_b32 v5, {4*j}, v4\nv_lshl_add_u32 v2, v5, 4, v1")
        for cg in range(5):
            a(f"s_add_u32 m0, s55, {cg*16128 + j*1024}")
            a(f"buffer_load_dwordx4 v2, {srd(SA)}, s54 offen offset:{cg*256} lds")
        a("s_add_u32 s54, s54, 5120")
    a("s_waitcnt vmcnt(20)\ns_branch L_x2d")
    a.label("L_nox2")
    a(f"""v_lshlrev_b32 v4, 2, v0
    v_and_b32 v4, 60, v4
    v_add_u32 v4, {L_MISC}, v4
    v_mov_b32 v5, 0
    ds_write_b32 v4, v5
    s_waitcnt vmcnt(0)""")
    a.label("L_x2d")
    a(f"""s_lshl_b32 s54, s{sCB}, 2
    s_add_u32 s54, s54, s{sW}
    s_lshl_b32 s54, s54, 1
    v_lshrrev_b32 v7, 5, v0
    v_add_u32 v4, s54, v7
    v_bfe_u32 v5, v0, 1, 4
    v_xor_b32 v5, v5, v4
    v_and_b32 v5, 15, v5
    v_lshlrev_b32 v4, 8, v4
    v_lshl_add_u32 v4, v5, 4, v4
    v_and_b32 v5, 1, v0
    v_lshl_add_u32 v4, v5, 3, v4
    v_add_u32 v5, 0x10000, v4
    s_lshl_b32 s54, s{sW}, 1
    v_add_u32 v7, s54, v7
    v_mul_u32_u24 v6, 1344, v7
    v_add_u32 v6, v6, v3
    v_add_u32 v6, {L_LNS}, v6
    v_lshlrev_b32 v7, 2, v7
    v_add_u32 v7, {L_MISC + M_G8}, v7""")
    GW, XV = 40, 20
    for i in range(10):
        a(f"v_lshlrev_b32 v{GW+2*i}, 16, v{10+i}\nv_and_b32 v{GW+1+2*i}, 0xffff0000, v{10+i}")
    a("s_waitcnt lgkmcnt(0)")
    nonce()
    stamp(1)
    a("s_barrier")
    for i in range(4):
        a(f"ds_read_b64 {vr(10+2*i,2)}, v4 offset:{16384*i}")
    a("ds_read_b64 v[18:19], v5\ns_waitcnt lgkmcnt(0)")
    for i in range(10):
        a(f"v_lshlrev_b32 v{XV+2*i}, 16, v{10+i}\nv_and_b32 v{XV+1+2*i}, 0xffff0000, v{10+i}")
    a(f"v_pk_add_f32 v[8:9], {vr(XV,2)}, {vr(XV+2,2)}\nv_pk_mul_f32 v[10:11], {vr(XV,2)}, {vr(GW,2)}")
    for i in range(1, 10):
        if i > 1:
            a(f"v_pk_add_f32 v[8:9], v[8:9], {vr(XV+2*i,2)}")
        a(f"v_pk_fma_f32 v[10:11], {vr(XV+2*i,2)}, {vr(GW+2*i,2)}, v[10:11]")
    a("v_add_f32 v8, v8, v9\nv_add_f32 v10, v10, v11")
    for d in ROR:
        a(f"v_add_f32_dpp v8, v8, v8 {d} row_mask:0xf bank_mask:0xf\nv_add_f32_dpp v10, v10, v10 {d} row_mask:0xf bank_mask:0xf")
    a(f"""v_mov_b32 v9, v8
    v_mov_b32 v11, v10
    v_permlane16_swap_b32 v8, v9
    v_permlane16_swap_b32 v10, v11
    v_add_f32 v8, v8, v9
    v_add_f32 v10, v10, v11
    v_mul_f32 v8, {fl(-1.0/640)}, v8
    v_mul_f32 v10, {fl(-math.log2(math.e))}, v10
    v_exp_f32 v10, v10""")
    for i in range(10):
        a(f"v_pk_add_f32 {vr(XV+2*i,2)}, {vr(XV+2*i,2)}, v[8:9] op_sel_hi:[1,0]")
    a(f"v_add_f32 v10, 1.0, v10\nv_pk_mul_f32 v[8:9], {vr(XV,2)}, {vr(XV,2)}\nv_rcp_f32 v10, v10")
    for i in range(1, 10):
        a(f"v_pk_fma_f32 v[8:9], {vr(XV+2*i,2)}, {vr(XV+2*i,2)}, v[8:9]")
    a("v_add_f32 v8, v8, v9\nds_write_b32 v7, v10")
    for d in ROR:
        a(f"v_add_f32_dpp v8, v8, v8 {d} row_mask:0xf bank_mask:0xf")
    a(f"""v_mov_b32 v9, v8
    v_permlane16_swap_b32 v8, v9
    v_add_f32 v8, v8, v9
    v_mul_f32 v8, {fl(1.0/640)}, v8
    v_add_f32 v8, {fl(1e-5)}, v8
    v_rsq_f32 v8, v8""")
    for i in range(5):
        for z in range(2):
            r = vr(XV+4*i+2*z, 2)
            a(f"v_pk_mul_f32 {r}, {r}, v[8:9] op_sel_hi:[1,0]")
        for z in range(2):
            a(f"v_cvt_pk_bf16_f32 v{10+2*i+z}, v{XV+4*i+2*z}, v{XV+4*i+2*z+1}")
        a(f"ds_write_b64 v6, {vr(10+2*i,2)} offset:{256*i}")
    a("s_waitcnt lgkmcnt(0)")
    stamp(2)
    a("s_barrier")
    a(f"s_cmp_eq_u32 s{sW}, 0\ns_cbranch_scc1 L_kvfin")
    a(f"""v_bfe_u32 v2, v0, 2, 2
    v_mul_u32_u24 v2, 1344, v2
    v_lshrrev_b32 v3, 4, v0
    v_lshl_add_u32 v2, v3, 5, v2
    v_and_b32 v4, 3, v0
    v_lshl_add_u32 v2, v4, 3, v2
    s_mul_i32 s54, s{sW}, 384
    s_add_u32 s54, s54, {L_LNS - 384}
    v_add_u32 v2, s54, v2""")
    for t in range(4):
        a(f"ds_read_b64_tr_b16 {vr(8+4*t,2)}, v2 offset:{128*t}\nds_read_b64_tr_b16 {vr(10+4*t,2)}, v2 offset:{128*t+5376}")
    a(f"""v_and_b32 v4, 15, v0
    v_lshlrev_b32 v4, 4, v4
    v_lshl_add_u32 v3, v3, 10, v4
    s_cmp_eq_u32 s{sW}, 3
    s_cselect_b32 s57, 0, {OOB}
    v_add_u32 v4, s57, v3
    s_lshr_b32 s54, s{sPID}, 2
    s_mul_i32 s54, s54, 40960
    s_and_b32 s55, s{sCB}, 3
    s_lshl_b32 s55, s55, 8
    s_add_u32 s54, s54, s55
    s_mul_i32 s55, s{sW}, 12288
    s_add_u32 s54, s54, s55
    s_add_u32 s54, s54, {WS_HT - 12288}
    s_waitcnt lgkmcnt(0)""")
    for t in range(4):
        a(f"buffer_store_dwordx4 {vr(8+4*t,4)}, v{3 if t < 3 else 4}, {srd(WS)}, s54 offen sc1\ns_add_u32 s54, s54, 4096")
    a("s_waitcnt vmcnt(4)")
    arrive(C_X, 2, 3)
    a(f"""s_lshl_b32 s54, s{sPID}, 7
    s_add_u32 s54, s54, {WS_FH}
    s_waitcnt vmcnt(0)""")
    arrive_flag(C_H, 2, 2, 3, 54)
    a("s_branch L_kvpoll")

    a.label("L_kvfin")
    a(f"""v_lshlrev_b32 v1, 2, v0
    v_add_u32 v6, {L_MISC + M_G8}, v1
    ds_read_b32 v7, v6
    s_bitcmp1_b32 s{sCB}, 0
    s_cselect_b32 s54, 31, 15
    s_cselect_b32 s55, 5, 4
    s_cselect_b32 s56, 5, 9
    s_lshl_b32 s56, s56, 4
    v_and_b32 v2, s54, v0
    v_lshrrev_b32 v3, s55, v0
    v_mul_u32_u24 v4, s56, v2
    v_lshl_add_u32 v4, v3, 5, v4
    v_add_u32 v4, {L_PW}, v4""")
    for p in range(4):
        a(f"ds_read_b128 {vr(8+8*p,4)}, v4 offset:{p*PW}\nds_read_b128 {vr(12+8*p,4)}, v4 offset:{p*PW+16}")
    a(f"""s_lshl_b32 s58, s{sPID}, 7
    s_add_u32 s59, s58, {WS_G}
    s_add_u32 s58, s58, {WS_FKV}
    s_lshr_b32 s54, s{sPID}, 2
    s_mul_i32 s54, s54, 3072
    s_add_u32 s54, s54, {WS_KV}
    s_bfe_u32 s57, s{sCB}, 0x10001
    s_waitcnt lgkmcnt(0)""")
    for i in range(4):
        a(f"v_pk_add_f32 {vr(8+2*i,2)}, {vr(8+2*i,2)}, {vr(16+2*i,2)}")
        a(f"v_pk_add_f32 {vr(24+2*i,2)}, {vr(24+2*i,2)}, {vr(32+2*i,2)}")
    for i in range(4):
        a(f"v_pk_add_f32 {vr(8+2*i,2)}, {vr(8+2*i,2)}, {vr(24+2*i,2)}")
    for i in range(4):
        a(f"v_cvt_pk_bf16_f32 v{16+i}, v{8+2*i}, v{9+2*i}")
    a(f"s_bitcmp1_b32 s{sCB}, 0\ns_cbranch_scc1 L_vfin")
    a(f"""s_lshl_b32 s57, s57, 4
    v_add_u32 v2, s57, v2
    v_lshlrev_b32 v4, 4, v2
    v_lshl_add_u32 v4, v3, 9, v4
    v_lshlrev_b32 v5, 3, v2
    v_lshl_add_u32 v5, v3, 8, v5
    s_mov_b32 exec_hi, 0
    buffer_store_dwordx4 v[16:19], v4, {srd(WS)}, s54 offen sc1
    s_mov_b32 exec_lo, 0
    s_mov_b32 exec_hi, 0xffff0000
    v_mov_b32 v16, 0x3f803f80
    v_mov_b32 v17, 0x00003f80
    s_mov_b32 exec_hi, -1
    buffer_store_dwordx2 v[16:17], v5, {srd(WS)}, s54 offen offset:512 sc1
    s_mov_b64 exec, 0xff
    buffer_store_dword v7, v1, {srd(WS)}, s59 offen sc1
    s_mov_b64 exec, -1
    v_mov_b32 v21, 0
    s_mov_b32 exec_hi, 0xffff""")
    for i in range(4):
        a(f"v_fmac_f32 v21, v{8+i}, v{8+i}")
    a("s_mov_b32 exec_hi, 0")
    for i in range(4, 8):
        a(f"v_fmac_f32 v21, v{8+i}, v{8+i}")
    a("""s_mov_b64 exec, -1
    v_mov_b32 v22, v21
    v_permlane32_swap_b32 v21, v22
    v_add_f32 v21, v21, v22
    v_mov_b32 v22, v21
    v_permlane16_swap_b32 v21, v22
    v_add_f32 v21, v21, v22""")
    for d in ROR:
        a(f"v_max_u32_dpp v21, v21, v21 {d} row_mask:0xf bank_mask:0xf")
    a("s_branch L_kvflag")
    a.label("L_vfin")
    a(f"""s_mul_i32 s57, s57, 768
    s_add_u32 s54, s54, s57
    v_mul_u32_u24 v4, 384, v3
    v_lshl_add_u32 v4, v2, 4, v4
    s_mov_b32 exec_lo, 0x100000
    s_mov_b32 exec_hi, 0x100000""")
    for i in range(4):
        a(f"v_mov_b32 v{16+i}, 0x3f803f80")
    a(f"""s_mov_b32 exec_lo, 0x1fffff
    s_mov_b32 exec_hi, 0x1fffff
    buffer_store_dwordx4 v[16:19], v4, {srd(WS)}, s54 offen offset:1536 sc1
    s_mov_b64 exec, 0xff
    buffer_store_dword v7, v1, {srd(WS)}, s59 offen sc1
    s_mov_b32 exec_lo, 0xfffff
    s_mov_b32 exec_hi, 0xfffff
    v_max3_f32 v8, |v8|, |v9|, |v10|
    v_max3_f32 v8, v8, |v11|, |v12|
    v_max3_f32 v8, v8, |v13|, |v14|
    v_max_f32_e64 v8, v8, |v15|
    v_cmp_nge_f32 vcc, {fl(2.0**60)}, v8
    s_cmp_eq_u64 vcc, 0
    s_cselect_b32 s54, 0, 0x7f800000
    v_mov_b32 v21, s54""")
    a.label("L_kvflag")
    arrive(C_X, 2, 3)
    a(f"""s_mov_b64 exec, 1
    v_mov_b32 v20, s{sN}
    s_waitcnt vmcnt(0)
    buffer_store_dwordx2 v[20:21], v1, {srd(WS)}, s58 offen sc1
    s_mov_b64 exec, -1""")

    Q, S, O, KV = 6, [54, 70], 86, [214, 228, 242]
    a.label("L_kvpoll")
    stamp(3)
    a(f"""v_lshlrev_b32 v4, 7, v0
    s_lshl_b32 s54, s{sW}, 13
    s_add_u32 s54, s54, {WS_FKV}
    v_lshlrev_b32 v1, 4, v0
    v_lshlrev_b32 v2, 3, v0
    v_and_b32 v5, 31, v0
    v_lshrrev_b32 v3, 5, v0
    v_mul_u32_u24 v3, 384, v3
    v_lshl_add_u32 v3, v5, 4, v3
    v_mov_b32 v6, {OOB}
    v_cmp_lt_u32 vcc, 20, v5
    s_mov_b32 s63, 0
    v_mov_b32 v0, 0xdddddddd
    v_cndmask_b32 v3, v3, v6, vcc""")
    for i in range(8):
        a(f"v_mov_b64 {vr(Q+6*i+4,2)}, 0")

    def zero_o():
        for i in range(64):
            a(f"v_mov_b64 {vr(O+2*i,2)}, 0")

    zero_o()

    def kvload(buf):
        b = KV[buf]
        return [f"buffer_load_dwordx4 {vr(b,4)}, v1, {srd(WS)}, s60 offen sc1",
                f"buffer_load_dwordx2 {vr(b+4,2)}, v2, {srd(WS)}, s60 offen offset:1024 sc1",
                f"buffer_load_dwordx4 {vr(b+6,4)}, v3, {srd(WS)}, s60 offen offset:1536 sc1",
                f"buffer_load_dwordx4 {vr(b+10,4)}, v3, {srd(WS)}, s60 offen offset:2304 sc1",
                "s_add_u32 s60, s60, 3072"]

    def kvstart():
        a(f"s_mul_i32 s60, s{sW}, 49152\ns_add_u32 s60, s60, {WS_KV}")

    kvstart()
    poll(4, 54, S[0], wide=True)
    stamp(4)
    a("\n".join(kvload(0) + kvload(1)))
    a(f"v_mov_b32 v4, {L_MISC}\nds_max_u32 v4, v{S[0]+1} offset:{C_KMAX}")
    for r in range(4):
        a(f"""s_add_u32 s54, s{sW}, {r+1}
        s_and_b32 s54, s54, 3
        s_mul_i32 s54, s54, 2560
        v_add_u32 v{S[1]+r}, s54, v1
        v_add_u32 v{S[1]+4+r}, s54, v2""")
    wait_cnt(C_Q, 4, 4, 5)
    stamp(5)
    a("s_mov_b32 exec_hi, 0")
    for j in range(8):
        a(f"ds_read_b64 {vr(Q+6*j+4,2)}, v{S[1]+4+(j>>1)} offset:{L_QF+1280*(j&1)+1024}")
    a("s_mov_b32 exec_hi, -1")
    for j in range(8):
        a(f"ds_read_b128 {vr(Q+6*j,4)}, v{S[1]+(j>>1)} offset:{L_QF+1280*(j&1)}")
    arrive(C_V, 4, 5)
    a(f"s_setprio {o['p_a']}\ns_waitcnt lgkmcnt(0)")

    def q1(buf, b, dst):
        a(f"v_mfma_f32_32x32x16_bf16 {vr(dst,16)}, {vr(KV[buf],4)}, {vr(Q+6*b,4)}, 0")

    def q2(buf, b, dst):
        a(f"v_mfma_f32_32x32x8_bf16 {vr(dst,16)}, {vr(KV[buf]+4,2)}, {vr(Q+6*b+4,2)}, {vr(dst,16)}")

    def pv(buf, b, half, src):
        a(f"v_smfmac_f32_32x32x32_bf16 {vr(O+16*b,16)}, {vr(KV[buf]+6+4*half,4)}, {vr(src+8*half,8)}, v0")

    def ex(buf, lo, hi, nohaz=False, wide=False):
        for i in range(lo, hi):
            a(f"v_exp_f32{'_e64' if wide and i == lo else ''} v{buf+i}, v{buf+i}", nohaz=nohaz)

    def group(g, entry=None, last=False):
        cb_, nb, pb = g % 3, (g + 1) % 3, (g + 2) % 3
        for b in range(8):
            cur, nxt = S[b & 1], S[(b + 1) & 1]
            ex(cur, 0, 2, nohaz=True)
            pv(cb_ if b else pb, (b + 7) % 8, 1, nxt)
            if b == 0 and entry:
                a.label(entry)
            if b == 0 and not last:
                a("\n".join(kvload(pb)))
            if last and 2 <= b:
                j = b - 2
                for i in range(3):
                    a(f"ds_write_b128 v{1+(j>>1)}, {vr(O+16*j+4*i,4)} offset:{3072*(j&1)+1024*i}")
            if last and b == 7:
                arrive(C_D, 4, 5)
                ex(cur, 2, 10, nohaz=True)
                pv(cb_, b, 0, cur)
                ex(cur, 10, 16)
                pv(cb_, b, 1, cur)
                return
            ex(cur, 2, 6, nohaz=True, wide=(b == 7))
            if b == 7:
                a("s_waitcnt vmcnt(4)")
            q1(cb_ if b < 7 else nb, (b + 1) % 8, nxt)
            ex(cur, 6, 10)
            q2(cb_ if b < 7 else nb, (b + 1) % 8, nxt)
            ex(cur, 10, 14)
            pv(cb_, b, 0, cur)
            ex(cur, 14, 16)

    a.label("L_astart")
    a("s_mov_b32 s62, 4\ns_waitcnt vmcnt(4)")
    stamp(6)
    q1(0, 0, S[0])
    q2(0, 0, S[0])
    ex(S[0], 0, 2)
    a("s_branch L_aentry")
    a(".p2align 3")
    a.label("L_attn")
    group(0, entry="L_aentry")
    group(1)
    group(2)
    a("s_sub_u32 s62, s62, 1\ns_cbranch_scc0 L_attn")
    a("s_cmp_lg_u32 s63, 0\ns_cbranch_scc1 L_alast")
    wait_cnt(C_V, 8, 4, 5)
    a(f"""ds_read_b64 v[4:5], v4 offset:{C_QMAX}
    s_waitcnt lgkmcnt(0)
    v_mul_f32 v4, v4, v5
    v_cmp_nge_f32 vcc, {fl(SAFE_B * SAFE_B / 1.03)}, v4
    s_cbranch_vccnz L_truemax""")
    a.label("L_alast")
    for r in (2, 1, 0):
        a(f"""s_add_u32 s54, s{sW}, {r+1}
        s_and_b32 s54, s54, 3
        s_mul_i32 s54, s54, 18432
        s_add_u32 s54, s54, {L_OX + r*6144}
        v_add_u32 v{1+r}, s54, v1""")
    a(".p2align 3")
    group(15, last=True)
    stamp(7)
    lane(0)
    a(f"""s_mul_i32 s54, s{sW}, 18432
    v_lshlrev_b32 v1, 4, v0
    v_add_u32 v1, s54, v1
    v_and_b32 v2, 31, v0
    v_lshlrev_b32 v2, 2, v2
    v_add_u32 v2, {L_MISC + M_G64}, v2
    ds_read2_b32 v[6:7], v2 offset0:0 offset1:32""")
    wait_cnt(C_D, 4, 4, 5)
    stamp(8)
    for r in range(3):
        for t in range(2):
            for i in range(3):
                a(f"ds_read_b128 {vr(O+24*r+12*t+4*i,4)}, v1 offset:{L_OX+6144*r+3072*t+1024*i}")
    a(f"""v_bfe_u32 v2, v0, 4, 1
    v_and_b32 v3, 15, v0
    v_lshlrev_b32 v2, 10, v2
    v_lshl_add_u32 v2, v3, 4, v2
    v_lshrrev_b32 v4, 5, v0
    v_lshl_add_u32 v2, v4, 8, v2
    v_lshrrev_b32 v4, 4, v0
    v_lshlrev_b32 v4, 10, v4
    v_lshl_add_u32 v3, v3, 3, v4
    s_mul_i32 s54, s{sTB}, 81920
    s_lshr_b32 s55, s{sCB}, 1
    s_mul_i32 s55, s55, 20480
    s_add_u32 s54, s54, s55
    s_add_u32 s54, s54, {WS_O}
    s_and_b32 s55, s{sCB}, 1
    s_lshl_b32 s55, s55, 1
    s_lshr_b32 s56, s{sW}, 1
    s_add_u32 s55, s55, s56
    s_and_b32 s56, s{sW}, 1
    s_lshl_b32 s56, s56, 9
    s_add_u32 s54, s54, s56
    s_lshl_b32 s56, s55, 7
    s_add_u32 s56, s56, s54
    s_add_u32 s56, s56, 16384
    s_lshl_b32 s55, s55, 12
    s_add_u32 s54, s54, s55""")
    for r in range(3):
        a(f"s_waitcnt {lg(12-6*r)}")
        for t in range(2):
            for i in range(6):
                d = vr(O+96+16*t+2*i, 2)
                a(f"v_pk_add_f32 {d}, {d}, {vr(O+24*r+12*t+2*i,2)}")
    for t in range(2):
        a(f"v_mov_b32 v{8+2*t}, v{O+96+16*t+8}\nv_mov_b32 v{9+2*t}, v{O+96+16*t+8}")
    a("v_permlane32_swap_b32 v8, v9\nv_permlane32_swap_b32 v10, v11\nv_rcp_f32 v8, v9\nv_rcp_f32 v10, v11")
    a("v_mul_f32 v8, v8, v6\nv_mul_f32 v10, v10, v7")
    for t in range(2):
        for i in range(6):
            d = vr(O+96+16*t+2*i, 2)
            a(f"v_pk_mul_f32 {d}, {d}, {vr(8+2*t,2)} op_sel_hi:[1,0]")
        for i in range(6):
            a(f"v_cvt_pk_bf16_f32 v{12+6*t+i}, v{O+96+16*t+2*i}, v{O+96+16*t+2*i+1}")
        a(f"buffer_store_dwordx4 {vr(12+6*t,4)}, v2, {srd(WS)}, s54 offen offset:{2048*t} sc1")
    a(f"""v_permlane32_swap_b32 v16, v22
    v_permlane32_swap_b32 v17, v23
    buffer_store_dwordx2 v[16:17], v3, {srd(WS)}, s56 offen sc1
    s_lshl_b32 s54, s{sPID}, 7
    s_add_u32 s54, s54, {WS_FO}
    s_waitcnt vmcnt(0)""")
    arrive_flag(C_O, 3, 4, 5, 54)
    stamp(9)
    a(f"""s_or_b32 s54, s2, s{sW}
    s_cmp_lg_u32 s54, 0
    s_cbranch_scc1 L_final
    s_mov_b64 exec, 1
    v_mov_b32 v5, s{sN}
    buffer_store_dword v5, v0, {srd(WS)}, 0 offen sc1
    s_mov_b64 exec, -1
    s_branch L_final""")

    a.label("L_truemax")
    a("s_waitcnt vmcnt(0)\ns_mov_b32 s63, 1\ns_mov_b32 s62, 16\ns_nop 7")
    for b in range(8):
        a(f"v_mov_b32 v{O+b}, 0xff800000")
    kvstart()
    a.label("L_tm")
    a("\n".join(kvload(0)[:2] + kvload(0)[4:]))
    a("s_waitcnt vmcnt(0)")
    for b in range(8):
        q1(0, b, S[0])
        q2(0, b, S[0])
        for i in range(8):
            a(f"v_max3_f32 v{O+b}, v{O+b}, v{S[0]+2*i}, v{S[0]+2*i+1}")
    a("s_sub_u32 s62, s62, 1\ns_cmp_lg_u32 s62, 0\ns_cbranch_scc1 L_tm")
    a(f"v_lshrrev_b32 v4, 2, v1\nv_and_b32 v4, 127, v4\ns_lshl_b32 s55, s{sW}, 10")
    for r in range(4):
        a(f"""s_add_u32 s54, s{sW}, {r+1}
        s_and_b32 s54, s54, 3
        s_lshl_b32 s54, s54, 8
        s_add_u32 s54, s54, {L_MROW}
        v_add_u32 v{S[1]+r}, s54, v4
        v_add_u32 v{S[1]+4+r}, s55, v{S[1]+r}""")
    for b in range(8):
        a(f"""v_mov_b32 v5, v{O+b}
        v_permlane32_swap_b32 v{O+b}, v5
        v_max_f32 v5, v5, v{O+b}
        ds_write_b32 v{S[1]+4+(b>>1)}, v5 offset:{128*(b&1)}""")
    a("s_waitcnt lgkmcnt(0)")
    arrive(C_F1, 4, 5)
    wait_cnt(C_F1, 4, 4, 5, sleep=1)
    for b in range(8):
        for w in range(4):
            a(f"ds_read_b32 v{O+4*b+w}, v{S[1]+(b>>1)} offset:{128*(b&1)+1024*w}")
    a("s_waitcnt lgkmcnt(0)")
    arrive(C_F1, 4, 5)
    a("s_mov_b32 exec_lo, 0")
    for b in range(8):
        m = O + 4 * b
        a(f"""v_max3_f32 v{m}, v{m}, v{m+1}, v{m+2}
        v_max_f32 v{m}, v{m}, v{m+3}
        v_and_b32 v{m+1}, 0xffff0000, v{m}
        v_sub_f32 v{m}, v{m}, v{m+1}
        v_and_b32 v{m+2}, 0xffff0000, v{m}
        v_sub_f32 v{m}, v{m}, v{m+2}
        v_cvt_pk_bf16_f32 v{Q+6*b+4}, -v{m+1}, -v{m+2}
        v_cvt_pk_bf16_f32 v{Q+6*b+5}, -v{m}, 0""")
    a("s_mov_b32 exec_lo, -1")
    wait_cnt(C_F1, 8, 4, 5, sleep=1)
    zero_o()
    kvstart()
    a("\n".join(kvload(0) + kvload(1)))
    a("s_branch L_astart")

    ACC, FB, TF, WOF = 32, [112, 132, 152], 172, 192
    vW, vOA, vOB = 16, 21, 26
    a.label("L_gemm")
    a(f"""s_setprio {o['p_g0']}
    s_sub_u32 s{sW}, s{sW}, 4
    v_lshlrev_b32 v1, 4, v0
    v_lshlrev_b32 v2, 2, v0
    s_mul_i32 s54, s{sW}, 1280
    s_mul_i32 s58, s{sW}, {PW}
    s_add_u32 s58, s58, {L_PW}
    s_mov_b32 s{SA+2}, 25600
    s_mov_b32 s{SA+3}, 0x00020000
    s_bitcmp1_b32 s{sCB}, 0
    s_waitcnt lgkmcnt(0)
    s_load_dword s{sN}, s[{sWS}:{sWS+1}], 0
    s_cselect_b64 s[{SA}:{SA+1}], s[{sWV_}:{sWV_+1}], s[{sWK}:{sWK+1}]""")
    for i in range(5):
        a(f"s_add_u32 m0, s58, {1280*i}")
        if i:
            a("s_add_u32 s54, s54, 5120")
        a(f"buffer_load_dwordx4 v1, {srd(SA)}, s54 offen lds")
        a(f"buffer_load_dword v2, {srd(SA)}, s54 offen offset:1024 lds")
    mksrd(SB, sWQ, 819200)
    mksrd(WS, sWS, WS_SIZE)
    a(f"s_mul_i32 s54, s{sCB}, 160\ns_movk_i32 s55, 1280")
    P = 200
    for q in range(5):
        a(f"""v_add_u32 v3, {64*q}, v0
        v_mul_u32_u24 v4, 6554, v3
        v_lshrrev_b32 v4, 16, v4
        v_mul_u32_u24 v5, 10, v4
        v_sub_u32 v3, v3, v5
        v_lshl_add_u32 v3, v3, 4, s54
        v_bfe_u32 v{P+3*q}, v4, 2, 2
        v_lshrrev_b32 v{P+3*q+1}, 4, v4
        v_and_b32 v4, 3, v4
        v_mad_u32_u24 v{P+3*q+2}, v4, s55, v3""")
        if q in (1, 2, 3):
            a(f"v_subrev_u32 v{P+3*q+2}, {1024*q}, v{P+3*q+2}")
        a(f"""v_lshl_add_u32 v4, v{P+3*q}, 1, v{P+3*q+1}
        v_mul_u32_u24 v4, 5120, v4
        v_add_u32 v{vW+q}, v4, v{P+3*q+2}""")

    def wslab(sr, vo, sm0, imm, soff):
        L = [f"s_add_u32 m0, s{sm0}, {imm}"]
        for q in range(4):
            L.append(f"buffer_load_dwordx4 v{vo+q}, {srd(sr)}, s{soff} offen offset:{1024*q} lds")
        L.append(f"s_add_u32 m0, s{sm0}, {imm+4096}")
        L.append(f"buffer_load_dwordx4 v{vo+4}, {srd(sr)}, s{soff} offen lds")
        return L

    a(f"s_mul_i32 s60, s{sW}, 40960")
    a("\n".join(wslab(SB, vW, 58, 6400, 60)))
    a("s_add_u32 s60, s60, 163840")
    a("\n".join(wslab(SB, vW, 58, 11520, 60)))
    for q in range(5):
        a(f"""v_lshrrev_b32 v3, 1, v{P+3*q}
        v_mul_u32_u24 v3, 5, v3
        v_and_b32 v4, 1, v{P+3*q}
        v_lshl_add_u32 v4, v{P+3*q+1}, 1, v4
        v_add_u32 v3, v3, v4
        v_mul_u32_u24 v3, 5120, v3
        v_add_u32 v{vOA+q}, v3, v{P+3*q+2}
        v_lshl_add_u32 v4, v{P+3*q}, 1, v{P+3*q+1}
        v_mul_u32_u24 v4, 25600, v4
        v_add_u32 v4, 20480, v4
        v_add_u32 v{vOB+q}, v4, v{P+3*q+2}""")
    XA, QD = 216, 224
    a(f"""v_lshrrev_b32 v3, 4, v0
    v_and_b32 v4, 15, v0
    v_bfe_u32 v5, v0, 2, 2
    v_and_b32 v6, 3, v0
    s_lshl_b32 s54, s{sW}, 2
    v_add_u32 v7, s54, v3
    v_xor_b32 v7, v7, v4
    v_lshlrev_b32 v7, 4, v7
    v_lshl_add_u32 v8, v4, 8, v7
    s_lshr_b32 s54, s{sCB}, 1
    s_lshl_b32 s54, s54, 12
    v_add_u32 v11, s54, v8
    v_add_u32 v12, 0x10000, v11""")
    for j in range(4):
        a(f"""s_xor_b32 s54, s{sW}, {j}
        s_lshl_b32 s54, s54, 12
        v_add_u32 v{XA+j}, s54, v8
        v_add_u32 v{XA+4+j}, 0x10000, v{XA+j}""")
    a(f"""v_lshl_add_u32 v7, v3, 2, v5
    v_mul_u32_u24 v7, 160, v7
    v_lshl_add_u32 v7, v6, 3, v7
    v_add_u32 v14, s58, v7
    v_lshl_add_u32 v10, v3, 3, v5
    v_mul_u32_u24 v10, 40, v10
    v_lshl_add_u32 v10, v6, 3, v10
    v_add_u32 v10, s58, v10
    s_bitcmp1_b32 s{sCB}, 0
    s_cselect_b32 s54, 5, 9
    s_lshl_b32 s54, s54, 4
    v_mul_u32_u24 v13, s54, v4
    v_lshl_add_u32 v13, v3, 4, v13
    v_add_u32 v13, s58, v13""")
    a(f"""s_and_b32 s54, s{sW}, 1
    s_lshl_b32 s54, s54, 4
    v_add_u32 v9, s54, v4
    s_lshr_b32 s54, s{sW}, 1
    s_mul_i32 s54, s54, 1280
    s_add_u32 s54, s54, {L_QF}""")
    for n in range(5):
        a(f"""v_add_u32 v8, {4*n}, v3
        v_mul_u32_u24 v15, 52, v8
        v_lshrrev_b32 v15, 8, v15
        v_mul_u32_u24 v31, 5, v15
        v_sub_u32 v8, v8, v31
        v_mul_u32_u24 v15, 2560, v15
        v_lshrrev_b32 v31, 1, v8
        v_lshl_add_u32 v15, v31, 9, v15
        v_and_b32 v31, 1, v8
        v_lshl_add_u32 v15, v31, 3, v15
        v_lshrrev_b32 v8, 2, v8
        v_sub_u32 v8, 4, v8
        v_lshlrev_b32 v8, v8, v9
        v_add3_u32 v{QD+n}, v15, v8, s54""")
    a("s_waitcnt vmcnt(10) lgkmcnt(0)")
    nonce()
    stamp(1)
    a("s_barrier")
    for i in range(5):
        if i < 4:
            a(f"ds_read_b128 {vr(32+4*i,4)}, v11 offset:{16384*i}")
        else:
            a(f"ds_read_b128 {vr(32+4*i,4)}, v12")
        for b in range(2):
            for z in range(2):
                a(f"ds_read_b64_tr_b16 {vr(52+8*i+4*b+2*z,2)}, v10 offset:{1280*i+32*b+160*z}")
    a(f"s_bitcmp1_b32 s{sCB}, 0\ns_waitcnt lgkmcnt(0)\ns_cbranch_scc1 L_vpart")
    for i in range(5):
        for b in range(2):
            c = "0" if i == 0 else vr(96+4*b, 4)
            a(f"v_mfma_f32_16x16x32_bf16 {vr(96+4*b,4)}, {vr(52+8*i+4*b,4)}, {vr(32+4*i,4)}, {c}")
    a("ds_write_b128 v13, v[96:99]\nds_write_b128 v13, v[100:103] offset:64\ns_branch L_kvpd")
    a.label("L_vpart")
    for i in range(5):
        for b in range(2):
            c = "0" if i == 0 else vr(96+4*b, 4)
            a(f"v_mfma_f32_16x16x32_bf16 {vr(96+4*b,4)}, {vr(32+4*i,4)}, {vr(52+8*i+4*b,4)}, {c}")
    a("ds_write_b128 v13, v[96:99]\nds_write_b128 v13, v[100:103] offset:1280")
    a.label("L_kvpd")
    a("s_waitcnt lgkmcnt(0)")
    stamp(2)
    a("s_barrier")

    def acc(i5, i4):
        return vr(ACC + 4 * (i5 * 4 + i4), 4)

    def interleave(ms, extra):
        k = 0
        for i, m in enumerate(ms):
            a(m)
            if k < len(extra):
                a(extra[k])
                k += 1
        for e in extra[k:]:
            a(e)

    def tread(dst, va, off):
        for n in range(5):
            for z in range(2):
                a(f"ds_read_b64_tr_b16 {vr(dst+4*n+2*z,2)}, v{va} offset:{off+32*n+2560*z}")

    TQ = [TF, WOF]

    def xread(i, dst):
        for j in range(4):
            if i < 4:
                a(f"ds_read_b128 {vr(dst+4*j,4)}, v{XA+j} offset:{16384*i}")
            else:
                a(f"ds_read_b128 {vr(dst+4*j,4)}, v{XA+4+j}")

    def qm(i, xb):
        return [f"v_mfma_f32_16x16x32_bf16 {acc(n,j)}, {vr(TQ[i&1]+4*n,4)}, {vr(xb+4*j,4)}, {'0' if i == 0 else acc(n,j)}"
                for n in range(5) for j in range(4)]

    for i in range(2):
        a("s_waitcnt vmcnt(5)")
        tread(TQ[i], 14, 6400 + 5120 * i)
        a("s_add_u32 s60, s60, 163840\ns_waitcnt lgkmcnt(0)")
        a("\n".join(wslab(SB, vW, 58, 6400 + 5120 * i, 60)))
    wait_cnt(C_X, 4, 13, 15)
    stamp(3)
    for i in range(3):
        xread(i, FB[i])
    a(f"s_waitcnt {lg(8)}")
    interleave(qm(0, FB[0]), [])
    a(f"s_waitcnt vmcnt(5) {lg(4)}")
    tread(TQ[0], 14, 6400)
    xread(3, FB[0])
    interleave(qm(1, FB[1]), [])
    a("s_add_u32 s60, s60, 163840\ns_waitcnt lgkmcnt(0)")
    a("\n".join(wslab(SB, vW, 58, 6400, 60)))
    a("s_waitcnt vmcnt(5)")
    tread(TQ[1], 14, 11520)
    xread(4, FB[1])
    interleave(qm(2, FB[2]), [])
    a("s_waitcnt lgkmcnt(0)")
    interleave(qm(3, FB[0]), [])
    a("s_waitcnt vmcnt(0)")
    tread(TQ[0], 14, 6400)
    a("v_add_u32 v8, s58, v1")
    for j in range(1, 4):
        a(f"""s_xor_b32 s54, s{sW}, {j}
        s_mul_i32 s54, s54, {PW}
        s_add_u32 s54, s54, {L_PW + 5120*(j-1)}
        v_add_u32 v{8+j}, s54, v1""")
    a("s_waitcnt lgkmcnt(0)")
    ms = qm(4, FB[1])
    ms = [ms[n*4+j] for j in (1, 2, 3, 0) for n in range(5)]
    wr = [f"ds_write_b128 v8, {acc(n,j)} offset:{5120*(j-1)+1024*n}" for j in (1, 2, 3) for n in range(5)]
    for m in ms[:9]:
        a(m)
    interleave(ms[9:], wr)
    a("s_waitcnt lgkmcnt(0)")
    arrive(C_P, 13, 15)
    wait_cnt(C_P, 4, 13, 15)
    for j in range(1, 4):
        for n in range(5):
            a(f"ds_read_b128 {acc(n,j)}, v{8+j} offset:{1024*n}")
    a(f"s_mov_b32 s56, {fl(QSCALE)}")
    for j in range(1, 4):
        a(f"s_waitcnt {lg(15-5*j)}")
        for n in range(5):
            for z in range(2):
                d = vr(ACC+16*n+2*z, 2)
                a(f"v_pk_add_f32 {d}, {d}, {vr(ACC+16*n+4*j+2*z,2)}")
    for n in range(5):
        for z in range(2):
            d = vr(ACC+16*n+2*z, 2)
            a(f"v_pk_mul_f32 {d}, {d}, s[56:57] op_sel_hi:[1,0]")
        for z in range(2):
            a(f"v_cvt_pk_bf16_f32 v{ACC+16*n+4+z}, v{ACC+16*n+2*z}, v{ACC+16*n+2*z+1}")
        a(f"ds_write_b64 v{QD+n}, {vr(ACC+16*n+4,2)}")
    a("s_waitcnt lgkmcnt(0)")
    arrive(C_Q, 13, 15)
    stamp(4)
    vT = 16
    a(f"""s_mul_i32 s58, s{sW}, {GR}
    s_add_u32 s58, s58, {L_G}
    v_add_u32 v14, s58, v7
    v_mul_u32_u24 v2, 336, v4
    v_lshl_add_u32 v2, v3, 4, v2
    v_add_u32 v2, s58, v2
    v_add_u32 v12, 4096, v1
    v_lshl_add_u32 v9, v3, 2, v5
    v_bfe_u32 v20, v9, 1, 2
    v_lshlrev_b32 v9, 7, v9
    v_lshl_add_u32 v9, v6, 3, v9
    v_add_u32 v13, s58, v9""")
    for b in range(4):
        a(f"v_xor_b32 v31, {b}, v20\nv_lshl_add_u32 v{8+b}, v31, 5, v13")
    a("""v_lshrrev_b32 v13, 3, v0
    v_bfe_u32 v31, v0, 1, 2
    v_bfe_u32 v15, v13, 1, 2
    v_xor_b32 v31, v31, v15
    v_and_b32 v15, 1, v0
    v_lshlrev_b32 v15, 4, v15
    v_lshl_add_u32 v31, v31, 5, v15
    v_lshrrev_b32 v20, 2, v13
    v_and_b32 v13, 3, v13
    v_lshl_add_u32 v20, v20, 3, v13""")

    def tsrc(stride):
        a(f"v_mul_u32_u24 v13, {stride}, v20\nv_add_u32 v{vT}, v13, v31")
        for q in range(1, 4):
            a(f"v_add_u32 v{vT+q}, {(16 * (q & 1) + 4 * (q >> 1)) * stride - 1024 * q}, v{vT}")

    def ld_f(slot):
        L = [f"buffer_load_dwordx4 {vr(FB[slot]+4*q,4)}, v1, {srd(SA)}, s60 offen offset:{1024*q} sc1" for q in range(4)]
        L.append(f"buffer_load_dwordx4 {vr(FB[slot]+16,4)}, v12, {srd(SA)}, s60 offen sc1")
        return L

    def dma_t(slot):
        L = [f"s_add_u32 m0, s58, {slot*4096}"]
        for q in range(4):
            L.append(f"buffer_load_dwordx4 v{vT+q}, {srd(SB)}, s61 offen offset:{1024*q} lds")
        return L

    def gemm_loop(tag, tstep, t_is_a):
        a("s_waitcnt vmcnt(5)")
        a.label(f"L_{tag}")
        for slot in range(3):
            a("s_waitcnt vmcnt(18)")
            for b in range(4):
                for z in range(2):
                    a(f"ds_read_b64_tr_b16 {vr(TF+4*b+2*z,2)}, v{8+b} offset:{slot*4096+2048*z}")
            a(f"""s_cmp_le_u32 s62, 3
            s_cselect_b32 s{SA+2}, 0, s{SA+2}
            s_cselect_b32 s{SB+2}, 0, s{SB+2}
            s_waitcnt lgkmcnt(0)""")
            dt, lf = dma_t(slot), ld_f(slot)
            k = 0
            for j in range(5):
                for b in range(4):
                    x, y = (vr(TF+4*b, 4), vr(FB[slot]+4*j, 4)) if t_is_a else (vr(FB[slot]+4*j, 4), vr(TF+4*b, 4))
                    a(f"v_mfma_f32_16x16x32_bf16 {acc(j,b)}, {x}, {y}, {acc(j,b)}")
                    if b < 3 and k < len(dt):
                        a(dt[k])
                        k += 1
                a(lf[j])
            a(f"s_add_u32 s60, s60, 40960\ns_add_u32 s61, s61, {tstep}\ns_sub_u32 s62, s62, 1\ns_cmp_eq_u32 s62, 0")
            if slot < 2:
                a(f"s_cbranch_scc1 L_{tag}_done")
            else:
                a(f"s_cbranch_scc0 L_{tag}")
        a.label(f"L_{tag}_done")
        a("s_waitcnt vmcnt(0)\ns_nop 1")

    def pre_t(tstep):
        for slot in range(3):
            a("\n".join(dma_t(slot)))
            a(f"s_add_u32 s61, s61, {tstep}")

    def pre_f():
        for slot in range(3):
            a("\n".join(ld_f(slot)))
            a("s_add_u32 s60, s60, 40960")

    tsrc(3456)
    mksrd(SA, sWS, WS_SIZE)
    mksrd(SB, sW1, 7077888)
    mksrd(SC, sB1, 3456)
    a(f"""s_cmp_eq_u32 s{sW}, 0
    s_cselect_b32 s{SC+2}, s{SC+2}, 0
    s_lshl_b32 s54, s{sFB}, 7
    v_lshlrev_b32 v13, 3, v3""")
    for b in range(4):
        a(f"buffer_load_dwordx2 {vr(TF+2*b,2)}, v13, {srd(SC)}, s54 offen offset:{32*b}")
    a(f"""s_mul_i32 s61, s{sW}, {16*32*3456}
    s_add_u32 s61, s61, s54
    s_mul_i32 s60, s{sW}, {16*40960}
    s_mul_i32 s54, s{sCB}, 5120
    s_add_u32 s60, s60, s54
    s_add_u32 s60, s60, {WS_HT}
    s_mov_b32 s62, 16""")
    wait_cnt(C_Q, 4, 13, 15)
    a(f"s_cmp_ge_u32 s{sFB}, 27\ns_cbranch_scc1 L_nopre")
    pre_t(32 * 3456)
    a.label("L_nopre")
    a(f"""v_and_b32 v13, 31, v0
    v_lshrrev_b32 v15, 5, v0
    v_mul_u32_u24 v15, 1280, v15
    s_mul_i32 s54, s{sW}, 2560
    s_add_u32 s54, s54, {L_QF}
    v_add_u32 v15, s54, v15
    v_lshl_add_u32 v32, v13, 4, v15
    v_lshl_add_u32 v33, v13, 3, v15
    ds_read_b128 v[36:39], v32
    ds_read_b128 v[40:43], v32 offset:512
    ds_read_b64 v[44:45], v33 offset:1024
    v_mov_b32 v34, 0
    v_mov_b32 v13, {L_MISC}
    s_waitcnt lgkmcnt(0)""")
    for i in range(10):
        a(f"v_dot2c_f32_bf16 v34, v{36+i}, v{36+i}", nohaz=i > 0)
    for d in ROR:
        a(f"v_max_u32_dpp v34, v34, v34 {d} row_mask:0xf bank_mask:0xf")
    a(f"""s_mov_b32 exec_lo, 0x10001
    s_mov_b32 exec_hi, 0x10001
    ds_max_u32 v13, v34 offset:{C_QMAX}
    s_mov_b64 exec, -1
    s_cmp_lg_u32 s{sW}, 0
    s_cbranch_scc1 L_nog""")
    a(f"""v_lshrrev_b32 v13, 3, v0
    v_lshlrev_b32 v13, 7, v13
    s_lshl_b32 s55, s{sTB}, 10
    s_add_u32 s54, s55, {WS_FKV}
    s_add_u32 s55, s55, {WS_G}""")
    poll(13, 54, 15)
    a(f"""v_and_b32 v15, 7, v0
    v_lshl_add_u32 v13, v15, 2, v13
    buffer_load_dword v15, v13, {srd(WS)}, s55 offen sc1
    v_lshlrev_b32 v13, 2, v0
    v_add_u32 v13, {L_MISC + M_G64}, v13
    s_waitcnt vmcnt(0)
    ds_write_b32 v13, v15""")
    a.label("L_nog")
    a("s_waitcnt lgkmcnt(0)")
    arrive(C_V, 13, 15)
    a(f"s_cmp_ge_u32 s{sFB}, 27\ns_cbranch_scc1 L_g2")
    a(f"""v_lshlrev_b32 v13, 7, v0
    s_lshl_b32 s54, s{sW}, 13
    s_add_u32 s54, s54, {WS_FH}""")
    poll(13, 54, 15)
    stamp(5)
    pre_f()
    for b in range(4):
        for z in range(2):
            a(f"v_lshlrev_b32 v{ACC+4*b+2*z}, 16, v{TF+2*b+z}\nv_and_b32 v{ACC+4*b+2*z+1}, 0xffff0000, v{TF+2*b+z}")
    for j in range(1, 5):
        for i in range(8):
            a(f"v_mov_b64 {vr(ACC+16*j+2*i,2)}, {vr(ACC+2*i,2)}")
    a(f"s_setprio {o['p_g1']}")
    gemm_loop("g1", 32 * 3456, True)
    stamp(6)
    a(f"s_setprio {o['p_g1e']}")
    a("""v_mul_u32_u24 v13, 272, v4
    v_lshl_add_u32 v15, v3, 4, v13
    v_add_u32 v15, s58, v15""")
    for j in range(5):
        for b in range(4):
            a(f"ds_write_b128 v15, {acc(j,b)} offset:{4352*j+64*b}")
    a(f"""s_and_b32 s55, s{sW}, 1
    s_lshr_b32 s56, s{sW}, 1
    s_lshl_b32 s54, s55, 7
    s_add_u32 s54, s54, {L_G}
    s_mul_i32 s57, s56, 4352
    s_add_u32 s57, s57, s54
    v_lshl_add_u32 v13, v3, 5, v13
    v_add_u32 v252, s57, v13
    v_add_u32 v253, {2*GR}, v252
    s_lshl_b32 s57, s56, 6
    s_add_u32 s57, s57, s54
    s_add_u32 s57, s57, {4*4352}
    v_bfe_u32 v13, v0, 1, 4
    v_mul_u32_u24 v13, 272, v13
    v_and_b32 v15, 32, v0
    v_add_u32 v13, v13, v15
    v_and_b32 v15, 1, v0
    v_lshl_add_u32 v13, v15, 4, v13
    v_add_u32 v254, s57, v13
    v_add_u32 v255, {2*GR}, v254
    s_waitcnt lgkmcnt(0)""")
    arrive(C_G1A, 13, 15)
    wait_cnt(C_G1A, 4, 13, 15, sleep=1)
    for p in range(4):
        of = (p & 1) * GR
        r8, r4 = (252, 254) if p < 2 else (253, 255)
        for rd in range(2):
            a(f"ds_read_b128 {vr(ACC+20*p+8*rd,4)}, v{r8} offset:{of+8704*rd}")
            a(f"ds_read_b128 {vr(ACC+20*p+8*rd+4,4)}, v{r8} offset:{of+8704*rd+16}")
        a(f"ds_read_b128 {vr(ACC+20*p+16,4)}, v{r4} offset:{of}")
    c1 = -2.0 * math.sqrt(2.0 / math.pi) * math.log2(math.e)
    a(f"""s_lshl_b32 s54, s{sFB}, 1
    s_add_u32 s54, s54, s55
    s_mul_i32 s54, s54, 40960
    s_mul_i32 s55, s{sCB}, 5120
    s_add_u32 s54, s54, s55
    s_add_u32 s54, s54, {WS_U}
    s_lshl_b32 s55, s56, 9
    s_add_u32 s55, s55, s54
    s_add_u32 s55, s55, 4096
    s_lshl_b32 s56, s56, 10
    s_add_u32 s54, s54, s56
    s_mov_b32 s56, {fl(c1 * 0.044715)}
    s_waitcnt lgkmcnt(0)""")
    arrive(C_G1A, 13, 15)
    a(f"v_mov_b32 v252, {fl(c1)}\nv_lshlrev_b32 v13, 3, v0")
    for i in range(10):
        a(f"v_pk_add_f32 {vr(ACC+2*i,2)}, {vr(ACC+2*i,2)}, {vr(ACC+20+2*i,2)}")
        a(f"v_pk_add_f32 {vr(ACC+40+2*i,2)}, {vr(ACC+40+2*i,2)}, {vr(ACC+60+2*i,2)}")
    X, T = ACC, ACC + 20
    for i in range(10):
        a(f"v_pk_add_f32 {vr(X+2*i,2)}, {vr(X+2*i,2)}, {vr(ACC+40+2*i,2)}")
    for i in range(10):
        a(f"v_pk_mul_f32 {vr(T+2*i,2)}, {vr(X+2*i,2)}, {vr(X+2*i,2)}")
    for i in range(10):
        a(f"v_pk_fma_f32 {vr(T+2*i,2)}, {vr(T+2*i,2)}, s[56:57], v[252:253] op_sel_hi:[1,0,0]")
    for i in range(10):
        a(f"v_pk_mul_f32 {vr(T+2*i,2)}, {vr(T+2*i,2)}, {vr(X+2*i,2)}")
    for i in range(20):
        a(f"v_exp_f32 v{T+i}, v{T+i}")
    for i in range(10):
        a(f"v_pk_add_f32 {vr(T+2*i,2)}, {vr(T+2*i,2)}, 1.0 op_sel_hi:[1,0]")
    for i in range(20):
        a(f"v_rcp_f32 v{T+i}, v{T+i}")
    for i in range(10):
        a(f"v_pk_mul_f32 {vr(X+2*i,2)}, {vr(X+2*i,2)}, {vr(T+2*i,2)}")
    for i in range(10):
        a(f"v_cvt_pk_bf16_f32 v{TF+i}, v{X+2*i}, v{X+2*i+1}")
    a(f"""buffer_store_dwordx4 {vr(TF,4)}, v1, {srd(WS)}, s54 offen sc1
    buffer_store_dwordx4 {vr(TF+4,4)}, v1, {srd(WS)}, s54 offen offset:2048 sc1
    buffer_store_dwordx2 {vr(TF+8,2)}, v13, {srd(WS)}, s55 offen sc1
    s_lshl_b32 s54, s{sCB}, 5
    s_add_u32 s54, s54, s{sFB}
    s_lshl_b32 s54, s54, 7
    s_add_u32 s54, s54, {WS_FU}
    s_waitcnt vmcnt(0)""")
    arrive_flag(C_G1B, 3, 13, 15, 54)
    wait_cnt(C_G1A, 8, 13, 15, sleep=1)
    a.label("L_g2")
    stamp(7)
    mksrd(SB, sWO, 819200)
    a(f"s_mul_i32 s63, s{sW}, {160*1280}\ns_mov_b32 s60, s63")
    for i in range(4):
        a("\n".join(wslab(SB, vOA, 58, i * 5120, 60)))
        a(f"s_add_u32 s60, s60, {40*1280}")
    tsrc(4096)
    mksrd(SA, sWS, WS_SIZE)
    mksrd(SC, sB2, 4096)
    a(f"""s_cmp_eq_u32 s{sW}, 0
    s_cselect_b32 s{SC+2}, s{SC+2}, 0
    s_mul_i32 s55, s{sW}, 14
    s_cmp_eq_u32 s{sW}, 3
    s_cselect_b32 s55, 41, s55
    s_lshr_b32 s62, s{sW}, 1
    s_sub_u32 s62, 14, s62
    s_lshl_b32 s54, s{sTB}, 7
    s_lshl_b32 s61, s55, 17
    s_add_u32 s61, s61, s54
    s_mul_i32 s60, s55, 40960
    s_mul_i32 s55, s{sCB}, 5120
    s_add_u32 s60, s60, s55
    s_add_u32 s60, s60, {WS_U}
    v_lshlrev_b32 v13, 1, v4""")
    for b in range(4):
        a(f"buffer_load_ushort v{TF+b}, v13, {srd(SC)}, s54 offen offset:{32*b}")
    wait_cnt(C_V, 8, 13, 15, sleep=1)
    a(f"""v_lshlrev_b32 v13, 2, v4
    v_add_u32 v13, {L_MISC + M_G64}, v13
    ds_read2_b32 v[252:253], v13 offset0:0 offset1:16
    ds_read2_b32 v[254:255], v13 offset0:32 offset1:48
    s_waitcnt vmcnt(9)""")
    for i in range(3):
        tread(WOF + 20 * i, 14, 5120 * i)
    mksrd(SB, sW2, 7077888)
    a("s_waitcnt lgkmcnt(0)")
    pre_t(32 * 4096)
    a(f"""v_min_u32 v13, 26, v0
    v_lshlrev_b32 v13, 7, v13
    s_lshl_b32 s54, s{sCB}, 12
    s_add_u32 s54, s54, {WS_FU}""")
    poll(13, 54, 15)
    stamp(8)
    pre_f()
    for b in range(4):
        a(f"v_lshlrev_b32 v{ACC+4*b}, 16, v{TF+b}\nv_lshlrev_b32 v{ACC+4*b+1}, 16, v{TF+b}")
        a(f"v_sub_f32 v{252+b}, 1.0, v{252+b}")
    for j in range(5):
        for b in range(4):
            for z in range(2):
                if j or z:
                    a(f"v_mov_b64 {vr(ACC+16*j+4*b+2*z,2)}, {vr(ACC+4*b,2)}")
    a(f"s_setprio {o['p_g2']}")
    gemm_loop("g2l", 32 * 4096, False)
    stamp(9)
    mksrd(SB, sWO, 819200)
    a("\n".join(wslab(SB, vOB, 58, 0, 63)))
    for j in range(5):
        for b in range(4):
            for z in range(2):
                r = vr(ACC+16*j+4*b+2*z, 2)
                sel = "op_sel:[0,1] op_sel_hi:[1,1]" if b & 1 else "op_sel_hi:[1,0]"
                a(f"v_pk_mul_f32 {r}, {r}, {vr(252+(b&2),2)} {sel}")
    a(f"""v_and_b32 v13, 1, v0
    v_lshlrev_b32 v13, 7, v13
    v_lshlrev_b32 v12, 3, v0
    s_lshl_b32 s54, s{sTB}, 10
    s_lshl_b32 s55, s{sW}, 8
    s_add_u32 s54, s54, s55
    s_add_u32 s54, s54, {WS_FO}
    s_mul_i32 s60, s{sTB}, 81920
    s_mul_i32 s55, s{sW}, 20480
    s_add_u32 s60, s60, s55
    s_add_u32 s60, s60, {WS_O}""")
    poll(13, 54, 15)
    stamp(10)
    OB = FB[0]
    for i in range(4):
        for b in range(4):
            a(f"buffer_load_dwordx4 {vr(OB+16*i+4*b,4)}, v1, {srd(WS)}, s60 offen offset:{1024*b} sc1")
        a("s_add_u32 s60, s60, 4096")
    for b in range(4):
        for z in range(2):
            a(f"buffer_load_dwordx2 {vr(OB+64+4*b+2*z,2)}, v12, {srd(WS)}, s60 offen offset:{1024*b+512*z} sc1")
    for i in range(5):
        a(f"s_waitcnt vmcnt({[20,16,12,8,0][i]})" + (" lgkmcnt(0)" if i == 3 else ""))
        wf = WOF + 20 * (i % 3)
        for n in range(5):
            for b in range(4):
                a(f"v_mfma_f32_16x16x32_bf16 {acc(n,b)}, {vr(wf+4*n,4)}, {vr(OB+16*i+4*b,4)}, {acc(n,b)}")
        if i < 2:
            tread(wf, 14, 15360 if i == 0 else 0)
    for n in range(5):
        for b in range(4):
            a(f"ds_write_b128 v2, {acc(n,b)} offset:{5376*b+64*n}")
    a(f"s_add_u32 s{sW}, s{sW}, 4\ns_waitcnt lgkmcnt(0)")
    stamp(11)

    a.label("L_final")
    mksrd(SA, sOUT, 2621440)

    def ftask(base, va):
        a(f"""s_lshl_b32 s54, s{sW}, 6
        s_add_u32 s54, s54, {base}
        v_add_u32 v1, s54, v0
        v_mul_u32_u24 v{va}, 6554, v1
        v_lshrrev_b32 v{va}, 16, v{va}
        v_mul_u32_u24 v{va+1}, 10, v{va}
        v_sub_u32 v1, v1, v{va+1}
        v_mul_u32_u24 v{va+1}, 336, v{va}
        v_lshl_add_u32 v{va+1}, v1, 5, v{va+1}
        v_add_u32 v{va+1}, {L_G}, v{va+1}
        v_mul_u32_u24 v{va}, 1280, v{va}
        v_lshl_add_u32 v{va}, v1, 4, v{va}""")

    def fread(va, r):
        for p in range(4):
            a(f"ds_read_b128 {vr(r+8*p,4)}, v{va+1} offset:{p*GR}")
            a(f"ds_read_b128 {vr(r+4+8*p,4)}, v{va+1} offset:{p*GR+16}")

    def ffin(va, r):
        for i in range(4):
            a(f"v_pk_add_f32 {vr(r+2*i,2)}, {vr(r+2*i,2)}, {vr(r+8+2*i,2)}")
            a(f"v_pk_add_f32 {vr(r+16+2*i,2)}, {vr(r+16+2*i,2)}, {vr(r+24+2*i,2)}")
        for i in range(4):
            a(f"v_pk_add_f32 {vr(r+2*i,2)}, {vr(r+2*i,2)}, {vr(r+16+2*i,2)}")
        for i in range(4):
            a(f"v_cvt_pk_bf16_f32 v{r+8+i}, v{r+2*i}, v{r+1+2*i}")
        a(f"buffer_store_dwordx4 {vr(r+8,4)}, v{va}, {srd(SA)}, s54 offen")

    ftask(0, 2)
    a(f"s_cmp_ge_u32 s{sW}, 2\ns_cbranch_scc1 L_f1")
    ftask(512, 4)
    a.label("L_f1")
    a(f"""s_mul_i32 s54, s{sTB}, 81920
    s_mul_i32 s55, s{sCB}, 160
    s_add_u32 s54, s54, s55
    s_barrier""")
    fread(2, 8)
    a(f"s_cmp_ge_u32 s{sW}, 2\ns_cbranch_scc1 L_f2")
    fread(4, 40)
    a("s_waitcnt lgkmcnt(0)")
    ffin(4, 40)
    a.label("L_f2")
    a("s_waitcnt lgkmcnt(0)")
    ffin(2, 8)
    if profile:
        a("s_waitcnt vmcnt(0)")
        stamp(12)
        a("s_memrealtime s[94:95]\ns_waitcnt lgkmcnt(0)")
        for k in range(16):
            a(f"v_mov_b32 v{20+k}, s{64+2*k}")
        a(f"""s_mul_i32 s54, s2, {NW}
        s_add_u32 s54, s54, s{sW}
        s_lshl_b32 s54, s54, 6
        s_add_u32 s54, s54, {WS_PROF}
        v_mov_b32 v1, 0
        s_mov_b64 exec, 1""")
        for k in range(4):
            a(f"buffer_store_dwordx4 {vr(20+4*k,4)}, v1, {srd(WS)}, s54 offen offset:{16*k}")
    a.label("L_end")
    a("s_endpgm")
    a.pad()

    head = open(f"cdna_kernels/{NAME}.s.ref").read().split("; @launch")[0]
    src = head + f"""; @launch grid=(256,1,1) block=({NW*64},1,1) lds={LDS_SIZE}
.amdgcn_target "amdgcn-amd-amdhsa--gfx950"
.text
.globl {NAME}_kernel
.p2align 8
.type {NAME}_kernel,@function
{NAME}_kernel:
""" + a.text() + f""".section .rodata,"a"
.p2align 6
.amdhsa_kernel {NAME}_kernel
  .amdhsa_next_free_vgpr 256
  .amdhsa_next_free_sgpr 102
  .amdhsa_accum_offset 256
  .amdhsa_group_segment_fixed_size 0
  .amdhsa_kernarg_size 112
  .amdhsa_user_sgpr_count 2
  .amdhsa_user_sgpr_kernarg_segment_ptr 1
  .amdhsa_system_sgpr_workgroup_id_x 1
.end_amdhsa_kernel
"""
    return src


if __name__ == "__main__":
    opt = {}
    for kv in sys.argv[1:]:
        k, v = kv.split("=")
        opt[k] = int(v)
    open(f"cdna_kernels/{NAME}.s", "w").write(gen(False, opt))
    open("prof.s", "w").write(gen(True, opt))
    print("ok")
```

```python
import sys, os, subprocess, struct, ctypes
sys.path.insert(0, "cdna_kernels")
import numpy as np

TEMPLATE = """
.amdgcn_target "amdgcn-amd-amdhsa--gfx950"
.text
.globl mb_kernel
.p2align 8
.type mb_kernel,@function
mb_kernel:
    s_load_dwordx2 s[4:5], s[0:1], 0
    s_load_dwordx2 s[6:7], s[0:1], 8
    s_waitcnt lgkmcnt(0)
    s_mov_b32 s8, s4
    s_mov_b32 s9, s5
    s_mov_b32 s10, {outbytes}
    s_mov_b32 s11, 0x00020000
    s_mov_b32 s12, s6
    s_mov_b32 s13, s7
    s_mov_b32 s14, {inbytes}
    s_mov_b32 s15, 0x00020000
    v_mov_b32 v255, v0
{init}
    s_mov_b32 s20, {iters}
    s_barrier
    s_memtime s[16:17]
    s_waitcnt lgkmcnt(0)
.p2align 6
L_loop:
{body}
    s_sub_u32 s20, s20, 1
    s_cmp_lg_u32 s20, 0
    s_cbranch_scc1 L_loop
    s_waitcnt vmcnt(0) lgkmcnt(0)
    s_memtime s[18:19]
    s_waitcnt lgkmcnt(0)
    s_sub_u32 s18, s18, s16
    v_mov_b32 v1, s18
    v_lshrrev_b32 v2, 6, v255
    s_mul_i32 s21, s2, {waves}
    v_add_u32 v2, s21, v2
    v_lshlrev_b32 v2, 2, v2
    buffer_store_dword v1, v2, s[8:11], 0 offen
    s_waitcnt vmcnt(0)
    s_endpgm
.section .rodata,"a"
.p2align 6
.amdhsa_kernel mb_kernel
  .amdhsa_next_free_vgpr {nvgpr}
  .amdhsa_next_free_sgpr 96
  .amdhsa_accum_offset {accoff}
  .amdhsa_group_segment_fixed_size 0
  .amdhsa_kernarg_size 16
  .amdhsa_user_sgpr_count 2
  .amdhsa_user_sgpr_kernarg_segment_ptr 1
  .amdhsa_system_sgpr_workgroup_id_x 1
.end_amdhsa_kernel
.amdgpu_metadata
---
amdhsa.version: [1, 2]
amdhsa.kernels:
  - .name: mb_kernel
    .symbol: mb_kernel.kd
    .kernarg_segment_size: 16
    .kernarg_segment_align: 8
    .group_segment_fixed_size: 0
    .private_segment_fixed_size: 0
    .wavefront_size: 64
    .sgpr_count: 96
    .vgpr_count: {nvgpr}
    .max_flat_workgroup_size: 1024
    .args:
      - {{.name: kernargs, .size: 16, .offset: 0, .value_kind: by_value}}
...
.end_amdgpu_metadata
"""

def build(name, body, init="", iters=1000, waves=4, nvgpr=256, inbytes=1<<24, grid=256, accoff=None):
    t = TEMPLATE
    if accoff is None: accoff=min(256,(nvgpr+3)//4*4)
    t = t.replace("v255", "v%d" % (min(nvgpr,accoff)-1))
    src = t.format(body=body, init=init, iters=iters, waves=waves, nvgpr=nvgpr, accoff=accoff,
                          outbytes=grid*waves*4, inbytes=inbytes)
    s = f"mb/{name}.s"; co = f"mb/{name}.co"
    open(s, "w").write(src)
    r = subprocess.run(["clang", "-x", "assembler", "-target", "amdgcn-amd-amdhsa", "-mcpu=gfx950", s, "-o", co], capture_output=True, text=True)
    assert r.returncode == 0, r.stderr
    return co

def run(co, waves=4, grid=256, lds=0, inbytes=1<<24, reps=3, indata=None):
    import cdna_launch as cl
    k = cl.AsmKernel(co, "mb_kernel", check=False)
    out = cl.DeviceBuffer(grid*waves*4)
    if indata is None:
        indata = np.random.randint(0, 2**15, size=inbytes//2, dtype=np.uint16)
    inp = cl.DeviceBuffer.from_numpy(indata)
    ka = struct.pack("<2Q", out.ptr, inp.ptr)
    res = None
    for _ in range(reps):
        k.launch((grid,1,1), (waves*64,1,1), ka, lds)
        cl.hip_check(cl._hip.hipDeviceSynchronize())
        res = out.to_numpy(np.uint32, (grid*waves,))
    k.unload()
    return res
```

```python
import sys, struct, subprocess, os
sys.path.insert(0, "cdna_kernels")
import numpy as np
from mb import TEMPLATE
def bf(x):
    u=np.asarray(x,dtype=np.float32).view(np.uint32); return ((u+0x7fff+((u>>16)&1))>>16).astype(np.uint16)
rng=np.random.default_rng(0)
def mkdata(zero=False):
    kv=np.zeros((64,1536),np.float32)
    kv[:,:512]=rng.standard_normal((64,512)); kv[:,512:640]=rng.standard_normal((64,128)); kv[:,640:768]=np.tile([1,1,1,0],32)
    v=np.zeros((64,2,2,24,8),np.float32); v[:,:,:,:20]=rng.standard_normal((64,2,2,20,8))*0.06; v[:,:,:,20]=1
    kv[:,768:]=v.reshape(64,768)
    q=rng.standard_normal((8,64,16)).astype(np.float32)*0.3226; q[:,32:,8:]=0; q[:,:,12:]=0
    d=np.zeros(1<<23,np.uint16)
    if not zero:
        d[:64*1536]=bf(kv).reshape(-1); d[0x20000:0x20000+8*64*16]=bf(q).reshape(-1)
        d[0x100000:0x300000]=bf(rng.standard_normal(0x200000))
    return d
Q,S,O,KV=6,[54,70],86,[214,228]
def vr(b,n): return f"v[{b}:{b+n-1}]"
def group(g, var):
    L=[]; kb,kbn=KV[g&1],KV[1-(g&1)]
    for b in range(8):
        cur=S[b&1]; nxt=S[(b+1)&1]; bn=(b+1)%8; bp=(b+7)%8
        k = kb if b<7 else kbn; vp = kb if b>0 else kbn
        q1=f"v_mfma_f32_32x32x16_bf16 {vr(nxt,16)}, {vr(k,4)}, {vr(Q+6*bn,4)}, 0"
        q2=f"v_mfma_f32_32x32x8_bf16 {vr(nxt,16)}, {vr(k+4,2)}, {vr(Q+6*bn+4,2)}, {vr(nxt,16)}"
        s1=f"v_smfmac_f32_32x32x32_bf16 {vr(O+16*b,16)}, {vr(kb+6,4)}, {vr(cur,8)}, v0"
        s2p=f"v_smfmac_f32_32x32x32_bf16 {vr(O+16*bp,16)}, {vr(vp+10,4)}, {vr(nxt+8,8)}, v0"
        e=[f"v_exp_f32 v{cur+i}, v{cur+i}" for i in range(16)]
        x1=[];x2=[]
        if b==0:
            x1=[f"buffer_load_dwordx4 {vr(kbn,4)}, v1, s[12:15], s38 offen", f"buffer_load_dwordx2 {vr(kbn+4,2)}, v2, s[12:15], s38 offen offset:1024",
                f"buffer_load_dwordx4 {vr(kbn+6,4)}, v3, s[12:15], s38 offen offset:1536", f"buffer_load_dwordx4 {vr(kbn+10,4)}, v3, s[12:15], s38 offen offset:2304","s_add_u32 s38, s38, 3072"]
        if b==7:
            e[2]=e[2].replace("v_exp_f32","v_exp_f32_e64"); x2=["s_waitcnt vmcnt(0)"]
        if var=="full": L += e[0:2]+[s2p]+x1+e[2:6]+x2+[q1]+e[6:10]+[q2]+e[10:14]+[s1]+e[14:16]
        elif var=="x16":
            q2=f"v_mfma_f32_32x32x16_bf16 {vr(nxt,16)}, {vr(242+4*(0 if k==KV[0] else 1),4)}, {vr(Q+6*bn+2,4)}, {vr(nxt,16)}"
            if b==0: x1[1]=x1[1].replace(vr(kbn+4,2), vr(244+4*(0 if kbn==KV[0] else 1),2))
            L += e[0:2]+[s2p]+x1+e[2:6]+x2+[q1]+e[6:10]+[q2]+e[10:14]+[s1]+e[14:16]
        elif var in ("x16z","x8r"):
            zb = 86+16*bn+14
            if var=="x16z": q2=f"v_mfma_f32_32x32x16_bf16 {vr(nxt,16)}, {vr(242+4*(0 if k==KV[0] else 1),4)}, v[250:253], {vr(nxt,16)}"
            else: q2=f"v_mfma_f32_32x32x8_bf16 {vr(nxt,16)}, {vr(244+4*(0 if k==KV[0] else 1),2)}, v[252:253], {vr(nxt,16)}"
            if b==0: x1[1]=x1[1].replace(vr(kbn+4,2), vr(244+4*(0 if kbn==KV[0] else 1),2))
            L += e[0:2]+[s2p]+x1+e[2:6]+x2+[q1]+e[6:10]+[q2]+e[10:14]+[s1]+e[14:16]
        elif var=="nopv": L += e[0:2]+x1+e[2:6]+x2+[q1]+e[6:10]+[q2]+e[10:14]+e[14:16]
        elif var=="noexp": L += [s2p]+x1+x2+[q1]+[q2]+[s1]
        elif var=="noq2": L += e[0:2]+[s2p]+x1+e[2:6]+x2+[q1]+e[6:10]+e[10:14]+[s1]+e[14:16]
        elif var=="dense":
            c=lambda i: f"v_cvt_pk_bf16_f32 v{242+i}, v{cur+2*i}, v{cur+2*i+1}"
            d1=f"v_mfma_f32_32x32x16_bf16 {vr(O+16*b,16)}, {vr(kb+6,4)}, v[242:245], {vr(O+16*b,16)}"
            d2p=f"v_mfma_f32_32x32x16_bf16 {vr(O+16*bp,16)}, {vr(vp+10,4)}, v[246:249], {vr(O+16*bp,16)}"
            L += e[0:2]+[d2p]+x1+e[2:4]+[c(0)]+e[4:6]+[c(1)]+x2+[q1]+e[6:8]+[c(2)]+e[8:10]+[c(3),q2]+e[10:12]+[c(4)]+e[12:14]+[c(5),d1]+e[14:16]+[c(6),c(7)]
        elif var=="exponly":
            e=[f"v_exp_f32 v{O+i}, v{cur+i}" for i in range(16)]
            L += e
    return L
def build(name, var, nit):
    init = "\n".join(f"    v_mov_b32 v{i}, 0" for i in range(4,255)) + f"""
    v_lshrrev_b32 v3, 6, v0
    s_nop 1
    v_readfirstlane_b32 s30, v3
    v_and_b32 v5, 63, v0
    v_lshlrev_b32 v1, 4, v5
    v_lshlrev_b32 v2, 3, v5
    v_and_b32 v4, 31, v5
    v_lshrrev_b32 v3, 5, v5
    v_mul_u32_u24 v3, 384, v3
    v_lshl_add_u32 v3, v4, 4, v3
    v_cmp_lt_u32 vcc, 20, v4
    v_mov_b32 v4, 0x40000000
    s_nop 1
    v_cndmask_b32 v3, v3, v4, vcc
    v_lshlrev_b32 v4, 5, v5
    v_mov_b32 v0, 0xdddddddd
    s_mov_b32 s38, 0x40000
    """ + "\n".join(f"buffer_load_dwordx4 {vr(Q+6*b,4)}, v4, s[12:15], s38 offen\n buffer_load_dwordx2 {vr(Q+6*b+4,2)}, v4, s[12:15], s38 offen offset:16\n s_add_u32 s38, s38, 2048" for b in range(8)) + f"""
    s_mul_i32 s38, s30, 49152
    buffer_load_dwordx4 {vr(KV[0],4)}, v1, s[12:15], s38 offen
    buffer_load_dwordx2 {vr(KV[0]+4,2)}, v2, s[12:15], s38 offen offset:1024
    s_waitcnt vmcnt(0)
    v_mfma_f32_32x32x16_bf16 {vr(S[0],16)}, {vr(KV[0],4)}, {vr(Q,4)}, 0
    v_mfma_f32_32x32x16_bf16 {vr(S[1],16)}, {vr(KV[0],4)}, {vr(Q+6,4)}, 0
    v_mov_b32 v252, v{Q+4}
    v_mov_b32 v253, v{Q+5}
    s_nop 15
    s_memrealtime s[44:45]
    """
    body = "\n".join(group(0,var)+group(1,var))+"\n s_cmp_ge_u32 s38, 190000\n s_cselect_b32 s38, 0, s38\n"
    t=TEMPLATE.replace("    s_memtime s[18:19]\n","    s_memtime s[18:19]\n    s_memrealtime s[46:47]\n").replace("    v_mov_b32 v1, s18\n","    s_sub_u32 s46, s46, s44\n    s_lshl_b32 s46, s46, 20\n    s_lshr_b32 s18, s18, 0\n    s_or_b32 s18, s18, s46\n    v_mov_b32 v1, s18\n")
    src=t.format(body=body, init=init, iters=nit, waves=4, nvgpr=256, accoff=256, outbytes=4096, inbytes=1<<24)
    open(f"mb/{name}.s","w").write(src)
    r = subprocess.run(["clang", "-x", "assembler", "-target", "amdgcn-amd-amdhsa", "-mcpu=gfx950", f"mb/{name}.s", "-o", f"mb/{name}.co"], capture_output=True, text=True)
    assert r.returncode == 0, r.stderr
    return f"mb/{name}.co"
if not os.path.exists('/dev/kfd'):
    for v in ("full","dense","exponly"): build("t",v,8)
    sys.exit(0)
import cdna_launch as cl, time
big=cl.DeviceBuffer(1<<26)
D={False:cl.DeviceBuffer.from_numpy(mkdata(False)), True:cl.DeviceBuffer.from_numpy(mkdata(True))}
for var in ("full","x8r","x16z","x16","x8r","x16z"):
  for zero in (False,):
    for nit in (8,):
        co=build(f"e_{var}_{nit}",var,nit)
        k=cl.AsmKernel(co,"mb_kernel",check=False); out=cl.DeviceBuffer(4096)
        res=[]
        for it in range(4):
            cl.hip_check(cl._hip.hipMemsetAsync(big._ptr, it, 1<<26, None))
            k.launch((256,1,1),(256,1,1), struct.pack("<2Q", out.ptr, D[zero].ptr), 100000)
            cl.hip_check(cl._hip.hipDeviceSynchronize())
            r=out.to_numpy(np.uint32,(1024,)); cyc=np.median(r&0xfffff); rt=np.median(r>>20)/100
            res.append((cyc,rt))
        print(f"{var:8s} zero={zero} iters={nit}: cyc {res[-1][0]:.0f} time {res[-1][1]:.2f} us clk {res[-1][0]/res[-1][1]/1000:.2f} | prev {res[-2][1]:.2f}", flush=True)
        k.unload()
```
